```python
import torch

def _softmax(x, axis=-1):
    return torch.softmax(x, dim=axis)
def _gelu(x):
    return torch.nn.functional.gelu(x, approximate="tanh")
def _silu(x):
    return torch.nn.functional.silu(x)
def _sigmoid(x):
    return torch.sigmoid(x)
def _layernorm(x, axis=-1, eps=1e-5):
    m = x.mean(dim=axis, keepdim=True)
    v = x.var(dim=axis, keepdim=True, unbiased=False)
    return (x - m) / torch.sqrt(v + eps)
def _scatter_add(tgt, idx, src, axis=0):
    return tgt.clone().index_add_(axis, idx, src)
def _segment_sum(src, seg, n):
    out = torch.zeros((n,) + src.shape[1:], dtype=src.dtype)
    return out.index_add_(0, seg, src)
def _pad(x, pw):
    flat = tuple(v for pair in reversed(pw) for v in pair)
    return torch.nn.functional.pad(x, flat)

kernel_name = 'standalone__mha_softmax__sampling'

def setup_inputs():

    _w = (lambda a: (lambda t: t.to(torch.bfloat16) if t.is_floating_point() else t)(torch.as_tensor(a)))
    B, H, Sq, Sk, D = 8, 16, 4, 4096, 256
    return {
        "q": _w((lambda *s: torch.randn(*s, dtype=torch.bfloat16) * 0.8)(B, H, Sq, D)),
        "k": _w((lambda *s: torch.randn(*s, dtype=torch.bfloat16) * 0.8)(B, H, Sk, D)),
        "v": _w((lambda *s: torch.randn(*s, dtype=torch.bfloat16) * 0.05)(B, H, Sk, D)),
    }

def reference(q, k, v):
    scale = q.shape[-1] ** -0.5
    scores = torch.einsum("bhqd,bhkd->bhqk", q, k) * scale
    p = _softmax(scores, axis=-1)
    return torch.einsum("bhqk,bhkd->bhqd", p, v)
```

```python
import re
def regs(tok):
    tok = tok.strip()
    neg = tok.lstrip('-')
    m = re.fullmatch(r'([vas])\[(\d+):(\d+)\]', neg)
    if m: return [(m.group(1), i) for i in range(int(m.group(2)), int(m.group(3)) + 1)]
    m = re.fullmatch(r'([vas])(\d+)', neg)
    if m: return [(m.group(1), int(m.group(2)))]
    if neg == 'vcc': return [('s', 'vcc')]
    if neg == 'exec': return [('s', 'exec')]
    if neg == 'm0': return [('s', 'm0')]
    return []
TRANS = ('v_exp_f32', 'v_rcp_f32', 'v_log_f32', 'v_rsq_f32', 'v_sqrt_f32')
def parse(line):
    line = line.split(';')[0].strip()
    if not line or line.endswith(':') or line.startswith('.'): return None
    op, _, rest = line.partition(' ')
    mods0 = ''
    m_ = re.search(r'\s(quad_perm:|row_|op_sel|neg_lo|neg_hi)', rest)
    if m_: mods0 = rest[m_.start():]; rest = rest[:m_.start()]
    ops = [t.strip() for t in re.split(r',\s*', rest)] if rest else []
    mods = ''
    if ops:
        parts = ops[-1].split(' ')
        ops[-1] = parts[0]; mods = ' '.join(parts[1:]) + mods0
    d = dict(op=op, line=line, w=[], r=[], kind='other', states=1, dpp=('quad_perm' in mods or 'row_' in mods), mods=mods)
    if op == 's_nop': d['states'] = int(ops[0]) + 1; d['kind'] = 'nop'
    elif op.startswith('v_mfma'):
        d['kind'] = 'mfma'; d['w'] = regs(ops[0]); d['A'] = regs(ops[1]); d['B'] = regs(ops[2]); d['C'] = regs(ops[3])
        d['r'] = d['A'] + d['B'] + d['C']; d['passes'] = 8 if '32x32' in op else 4
    elif op.startswith('v_permlane'):
        d['kind'] = 'valu'; d['perm'] = True; d['w'] = regs(ops[0]) + regs(ops[1]); d['r'] = list(d['w'])
    elif op.startswith('v_cmp'):
        d['kind'] = 'valu'; d['w'] = regs(ops[0]); d['r'] = sum((regs(o) for o in ops[1:]), [])
    elif op.startswith('v_readfirstlane') or op.startswith('v_readlane'):
        d['kind'] = 'valu'; d['rl'] = True; d['w'] = regs(ops[0]); d['r'] = sum((regs(o) for o in ops[1:]), [])
    elif op.startswith('v_'):
        d['kind'] = 'valu'; d['w'] = regs(ops[0]); d['r'] = sum((regs(o) for o in ops[1:]), [])
        if op.startswith('v_fmac') or op.startswith('v_pk_fmac'): d['r'] += d['w']
        if d['dpp']: d['dppsrc'] = regs(ops[1])
        d['trans'] = op.replace('_e32', '').replace('_e64', '') in TRANS
    elif op.startswith('buffer_load') or op.startswith('global_load'):
        d['kind'] = 'vmem'
        if 'lds' in mods.split(): d['r'] = sum((regs(o) for o in ops), []) + [('s', 'm0')]
        else: d['w'] = regs(ops[0]); d['r'] = sum((regs(o) for o in ops[1:]), [])
    elif op.startswith('buffer_store') or op.startswith('global_store'):
        d['kind'] = 'vmem'; d['r'] = sum((regs(o) for o in ops), []); d['store'] = True
        d['data'] = regs(ops[0]) if op.startswith('buffer') else regs(ops[1]); d['wide'] = 'x4' in op or 'x3' in op
    elif op.startswith('global_atomic') or op.startswith('buffer_atomic'):
        d['kind'] = 'vmem'
        if 'sc0' in mods.split() and op.startswith('global'): d['w'] = regs(ops[0]); d['r'] = sum((regs(o) for o in ops[1:]), [])
        else: d['r'] = sum((regs(o) for o in ops), [])
    elif op.startswith('ds_read'):
        d['kind'] = 'ds'; d['w'] = regs(ops[0]); d['r'] = sum((regs(o) for o in ops[1:]), [])
    elif op.startswith('ds_'):
        d['kind'] = 'ds'; d['r'] = sum((regs(o) for o in ops), [])
    elif op.startswith('s_'):
        d['kind'] = 'salu'
        if op.startswith('s_cmp') or op.startswith('s_cbranch') or op.startswith('s_waitcnt') or op in ('s_barrier', 's_endpgm', 's_branch', 's_sleep', 's_setprio'):
            d['r'] = sum((regs(o) for o in ops), [])
        else:
            d['w'] = regs(ops[0]) if ops else []; d['r'] = sum((regs(o) for o in ops[1:]), [])
            if 'saveexec' in op: d['w'] += [('s', 'exec')]
    return d
def need(p, c):
    n = 0
    pw = set(p['w']); cr = set(c['r']); cw = set(c['w'])
    if p['kind'] == 'valu':
        vw = {x for x in pw if x[0] in 'va'}; sw = {x for x in pw if x[0] == 's'}
        if c['kind'] == 'mfma' and vw & cr: n = max(n, 2)
        if c.get('dpp') and vw & set(c.get('dppsrc', [])): n = max(n, 2)
        if c.get('perm') and vw & cr: n = max(n, 2)
        if c.get('rl') and vw & cr: n = max(n, 1)
        if p.get('trans') and c['kind'] in ('valu',) and not c.get('trans') and vw & cr: n = max(n, 1)
        if p.get('trans') and c['kind'] in ('valu',) and c.get('trans') and vw & cr: n = max(n, 1)
        if c['kind'] == 'vmem' and sw & cr: n = max(n, 5)
        if c['kind'] == 'valu' and sw & cr: n = max(n, 2)
    if p['kind'] == 'mfma':
        P = p['passes']; big = {4: 8, 8: 12}[P]
        if c['kind'] == 'mfma':
            if pw & (set(c['A']) | set(c['B'])): n = max(n, big)
            if pw & set(c['C']) and (c['C'] != p['w'] or c['passes'] != P): n = max(n, {4: 6, 8: 10}[P])
            if pw & cw and c['w'] != p['w']: n = max(n, big)
        elif c['kind'] in ('valu', 'vmem', 'ds') and (pw & cr or pw & cw): n = max(n, big)
        if c['kind'] == 'valu' and set(p['C']) & cw: n = max(n, {4: 3, 8: 7}[P])
    if p.get('store') and p.get('wide') and set(p['data']) & cw: n = max(n, 2 if c['kind'] == 'valu' else 1)
    if p['kind'] == 'salu' and ('s', 'm0') in pw and c['kind'] == 'vmem' and ('s', 'm0') in cr: n = max(n, 1)
    return n
def check_seq(lines, label=''):
    ins = [x for x in (parse(l) for l in lines) if x]
    bad = 0
    for j, c in enumerate(ins):
        dist = 0
        for i in range(j - 1, max(-1, j - 24), -1):
            p = ins[i]
            n = need(p, c)
            if n > dist:
                print('HAZARD[%s] need %d have %d:\n   %s\n   %s' % (label, n, dist, p['line'], c['line'])); bad += 1
            dist += p['states']
            if dist >= 20: break
    return bad
def check_text(text):
    lines = text.split('\n')
    bad = check_seq(lines, 'linear')
    labels = {l.strip()[:-1]: i for i, l in enumerate(lines) if l.strip().endswith(':') and not l.strip().startswith(';')}
    for i, l in enumerate(lines):
        m = re.match(r'\s*s_c?branch\S*\s+(\S+)', l)
        if m and m.group(1) in labels:
            t = labels[m.group(1)]
            bad += check_seq(lines[max(0, i - 30):i + 1] + lines[t:t + 30], 'edge ' + m.group(1))
    return bad
if __name__ == '__main__':
    import sys
    for f in sys.argv[1:]:
        print(f, 'hazards:', check_text(open(f).read()))
```

```python
import sys
import hz
NAME = "standalone__mha_softmax__sampling_kernel"

def fix_hazards(lines):
    out = []; hist = []
    for l in lines:
        c = hz.parse(l)
        if c is None:
            out.append(l); continue
        dist = 0; extra = 0
        for p in reversed(hist[-24:]):
            n = hz.need(p, c)
            if n > dist: extra = max(extra, n - dist)
            dist += p['states']
            if dist >= 20: break
        if extra:
            nl = "s_nop %d" % (extra - 1); out.append(nl); hist.append(hz.parse(nl))
        out.append(l); hist.append(c)
    return out

def gen(N=5, half=0, grp=2, flags="nt", stamp=0, px=1, nocompute=0, kf=None, vf=None, of="", warm=0, sf="", rot=0, rsh=0):
    kf = flags if kf is None else kf; vf = flags if vf is None else vf
    L = []; e = L.append
    NW = 4; W = NW * grp
    LQ = 388
    LW = 4 * LQ * 4
    LDS = 128 + 4 * LW
    e("; @launch grid=(256,1,1) block=(256,1,1) lds=%d" % LDS)
    e('.amdgcn_target "amdgcn-amd-amdhsa--gfx950"')
    e(".text"); e(".globl %s" % NAME); e(".p2align 8"); e(".type %s,@function" % NAME); e("%s:" % NAME)
    KS, VS, QS, OS, WS = 16, 20, 24, 28, 32
    sW, sI, sC, sLO, sHI, sHEAD, sROLE = 36, 37, 38, 39, 40, 41, 49
    sB = 56
    sM = 60
    vK, vV, vM, vL = 1, 2, 3, 4
    x = 5
    vS = 12; vA = 20; vP = 28; vPb = 32; vT = 48; vO = 64; vQ = 80; vB = 88
    aK = 0
    ACC = 152
    def srd(n): return "s[%d:%d]" % (n, n + 3)
    def v4(n): return "v[%d:%d]" % (n, n + 3)
    def a4(n): return "a[%d:%d]" % (n, n + 3)

    e("s_cmp_ge_u32 s2, 256")
    e("s_cbranch_scc1 L_end")
    e("s_load_dwordx4 s[4:7], s[0:1], 0")
    e("s_load_dwordx4 s[8:11], s[0:1], 16")
    e("s_load_dwordx4 s[12:15], s[0:1], 32")
    if stamp: e("s_memrealtime s[50:51]")
    e("v_lshrrev_b32 v7, 6, v0")
    e("v_and_b32 v0, 63, v0")
    e("v_readfirstlane_b32 s%d, v7" % sW)
    e("v_lshrrev_b32 v9, 4, v0")
    e("v_and_b32 v10, 3, v0")
    e("v_bfe_u32 v11, v0, 2, 2")
    e("v_lshlrev_b32 v%d, 9, v11" % vK)
    e("v_lshl_add_u32 v%d, v9, 6, v%d" % (vK, vK))
    e("v_lshl_add_u32 v%d, v10, 4, v%d" % (vK, vK))
    e("v_and_b32 v8, 15, v0")
    e("v_lshlrev_b32 v%d, 9, v9" % vV)
    e("v_lshl_add_u32 v%d, v8, 4, v%d" % (vV, vV))
    tb = px.bit_length() - 1
    e("s_xor_b32 s44, s2, %d" % px)
    e("s_min_u32 s45, s44, s2")
    e("s_cmp_gt_u32 s2, s44")
    e("s_cselect_b32 s%d, 1, 0" % sROLE)
    e("s_lshr_b32 s46, s45, %d" % (tb + 1))
    e("s_lshl_b32 s46, s46, %d" % tb)
    e("s_and_b32 s45, s45, %d" % ((1 << tb) - 1))
    e("s_or_b32 s%d, s45, s46" % sHEAD)
    e("s_lshl_b32 s43, s%d, 21" % sHEAD)
    e("s_lshl_b32 s44, s%d, 11" % sHEAD)
    if grp == 2:
        e("s_lshl_b32 s45, s%d, 2" % sROLE)
        e("s_add_u32 s45, s45, s%d" % sW)
        e("s_lshl_b32 s%d, s45, 12" % sB)
    else:
        e("s_lshl_b32 s45, s%d, 20" % sROLE)
        e("s_lshl_b32 s46, s%d, 12" % sW)
        e("s_add_u32 s%d, s45, s46" % sB)
    if rot:
        e("s_lshr_b32 s46, %s, %d" % ("s%d" % sHEAD if grp == 2 else "s2", rsh))
        e("s_mul_i32 s46, s46, %d" % rot)
        e("s_and_b32 s46, s46, 15")
        e("s_mul_i32 s46, s46, %d" % (W * 4 * 4096))
        e("s_add_u32 s%d, s%d, s46" % (sB, sB))
        if grp == 1: e("s_lshl_b32 s68, s%d, 20" % sROLE)
    for c in range(1, 4): e("s_add_u32 s%d, s%d, %d" % (sB + c, sB, c * W * 4096))
    for s in (KS, VS):
        e("s_mov_b32 s%d, 0x200000" % (s + 2)); e("s_mov_b32 s%d, 0x20000" % (s + 3))
    e("s_mov_b32 s%d, 0x800" % (QS + 2)); e("s_mov_b32 s%d, 0x20000" % (QS + 3))
    e("s_mov_b32 s%d, 0x3db8aa3b" % sC)
    e("s_mov_b32 s%d, 0x05040100" % sLO)
    e("s_mov_b32 s%d, 0x07060302" % sHI)
    for b in range(4):
        e("s_mov_b32 s%d, 0x%x" % (sM + 2 * b, 0x11111111 << b)); e("s_mov_b32 s%d, 0x%x" % (sM + 2 * b + 1, 0x11111111 << b))
    e("s_mov_b32 s%d, 0" % sI)
    e("v_mov_b32 v%d, 0xff800000" % vM)
    e("v_mov_b32 v%d, 0" % vL)
    for i in range(16): e("v_mov_b32 v%d, 0" % (vO + i))
    for i in range(16): e("v_mov_b32 v%d, 0" % (vPb + i))
    for i in range(64): e("v_mov_b32 v%d, 0" % (vB + i))
    e("s_waitcnt lgkmcnt(0)")
    e("s_add_u32 s%d, s4, s44" % QS); e("s_addc_u32 s%d, s5, 0" % (QS + 1))
    e("s_add_u32 s%d, s6, s43" % KS); e("s_addc_u32 s%d, s7, 0" % (KS + 1))
    e("s_add_u32 s%d, s8, s43" % VS); e("s_addc_u32 s%d, s9, 0" % (VS + 1))
    for h in range(2):
        e("buffer_load_dwordx4 %s, v%d, %s, 0 offen offset:%d" % (v4(vQ + 4 * h), vK, srd(QS), h * 256))

    if warm:
        e("s_lshl_b32 s42, s%d, 14" % sHEAD)
        e("v_mov_b32 v5, s42")
        e("v_mov_b32 v6, s44")
        e("v_mov_b32 v7, 0")
        e("global_load_dword v8, v5, s[14:15] %s" % ("nt" if warm == 1 else "sc1"))
        e("global_load_dword v9, v6, s[10:11] %s" % ("nt" if warm == 1 else "sc1"))
        e("global_load_dword v10, v7, s[12:13] %s" % ("nt" if warm == 1 else "sc1"))
    def QK(t):
        a = vA + 4 * (t % 2)
        return ["v_mfma_f32_16x16x32_bf16 %s, %s, %s, 0" % (v4(a), a4(aK + t * 8), v4(vQ)),
                "v_mfma_f32_16x16x32_bf16 %s, %s, %s, %s" % (v4(a), a4(aK + t * 8 + 4), v4(vQ + 4), v4(a))]
    def EX(t):
        a = vA + 4 * (t % 2); s = vS + t
        r = ["v_mov_b32_dpp v%d, v%d quad_perm:[0,0,0,0] row_mask:0xf bank_mask:0xf" % (s, a)]
        for j in range(1, 4):
            r.append("v_add_f32_dpp v%d, v%d, v%d quad_perm:[%d,%d,%d,%d] row_mask:0xf bank_mask:0xf" % (s, a + j, s, j, j, j, j))
        if t % 2:
            r.append("v_max3_f32 v%d, v%d, v%d, v%d" % (x, vM if t == 1 else x, s - 1, s))
        return r
    def SM():
        r = []
        a = r.append
        a("v_mov_b32 v%d, v%d" % (x + 1, x))
        a("v_permlane32_swap_b32 v%d, v%d" % (x, x + 1))
        a("v_max_f32 v%d, v%d, v%d" % (x, x, x + 1))
        a("v_mov_b32 v%d, v%d" % (x + 1, x))
        a("v_permlane16_swap_b32 v%d, v%d" % (x, x + 1))
        a("v_max_f32 v%d, v%d, v%d" % (x, x, x + 1))
        a("v_sub_f32 v%d, v%d, v%d" % (x + 1, vM, x))
        a("v_mul_f32 v%d, s%d, v%d" % (x + 2, sC, x))
        a("v_mul_f32 v%d, s%d, v%d" % (x + 1, sC, x + 1))
        a("v_mov_b32 v%d, v%d" % (vM, x))
        a("v_exp_f32 v%d, v%d" % (x + 1, x + 1))
        for i in range(8): a("v_fma_f32 v%d, v%d, s%d, -v%d" % (vS + i, vS + i, sC, x + 2))
        for i in range(8): a("v_exp_f32 v%d, v%d" % (vS + i, vS + i))
        for i in range(16): a("v_mul_f32 v%d, v%d, v%d" % (vO + i, x + 1, vO + i))
        for p in range(4): a("v_cvt_pk_bf16_f32 v%d, v%d, v%d" % (vP + p, vS + 2 * p, vS + 2 * p + 1))
        a("v_add_f32 v%d, v%d, v%d" % (x + 3, vS, vS + 1))
        a("v_add_f32 v%d, v%d, v%d" % (x + 4, vS + 2, vS + 3))
        a("v_add_f32 v%d, v%d, v%d" % (x + 5, vS + 4, vS + 5))
        a("v_add_f32 v%d, v%d, v%d" % (x + 6, vS + 6, vS + 7))
        a("v_add_f32 v%d, v%d, v%d" % (x + 3, x + 3, x + 4))
        a("v_add_f32 v%d, v%d, v%d" % (x + 5, x + 5, x + 6))
        a("v_add_f32 v%d, v%d, v%d" % (x + 3, x + 3, x + 5))
        a("v_fma_f32 v%d, v%d, v%d, v%d" % (vL, vL, x + 1, x + 3))
        for b in range(4):
            for p in range(4):
                a("v_cndmask_b32_e64 v%d, 0, v%d, s[%d:%d]" % (vPb + 4 * b + p, vP + p, sM + 2 * b, sM + 2 * b + 1))
        return r
    seq = [(h, w, bb) for h in range(2) for w in range(4) for bb in range(2)]
    def R(h, i): return vB + (i * 2 + h) * 4
    def perm(u):
        h, w, bb = seq[u]; t = vT + 4 * (u % 4)
        return ["v_perm_b32 v%d, v%d, v%d, s%d" % (t + p, R(h, 2 * p + 1) + w, R(h, 2 * p) + w, sHI if bb else sLO) for p in range(4)]
    def pvm(u):
        h, w, bb = seq[u]; ee = 2 * w + bb; t = vT + 4 * (u % 4); o = vO + (h * 2 + (ee >> 2)) * 4
        return ["v_mfma_f32_16x16x32_bf16 %s, %s, %s, %s" % (v4(o), v4(t), v4(vPb + 4 * (ee & 3)), v4(o))]
    def PVlist():
        r = [perm(0)]
        for u in range(16):
            r.append((perm(u + 1) if u < 15 else []) + pvm(u))
        return r

    NS = N + half
    slots = [[] for _ in range(32)]
    if not nocompute:
        g = PVlist(); lo = NS - 1; n = 16 - lo
        for k, grpx in enumerate(g): slots[lo + (k * n) // len(g)] += grpx
        for t in range(8):
            slots[2 * t + 1 + NS] = slots[2 * t + 1 + NS] + QK(t)
            slots[2 * t + 2 + NS] = slots[2 * t + 2 + NS] + EX(t)
        sm = SM(); lo = 16 + NS + 1; n = 32 - lo
        assert n >= 1
        for k, ins in enumerate(sm): slots[lo + (k * n) // len(sm)].append(ins)
    e("L_loop:")
    for s in range(32):
        e("s_waitcnt vmcnt(%d)" % (N - 1 + (half if s % 2 else 0)))
        j = s & 15; t = j >> 1; h = j & 1
        off = (t & 1) * 2048 + h * 256
        if s < 16:
            e("buffer_load_dwordx4 %s, v%d, %s, s%d offen offset:%d %s" % (a4(aK + j * 4), vK, srd(KS), sB + (t >> 1), off, kf))
        else:
            e("buffer_load_dwordx4 %s, v%d, %s, s%d offen offset:%d %s" % (v4(R(h, t)), vV, srd(VS), sB + (t >> 1), off, vf))
        for ins in slots[s]: e(ins)
    for c in range(4):
        e("s_add_u32 s%d, s%d, %d" % (sB + c, sB + c, W * 4 * 4096))
        if rot:
            e("s_and_b32 s%d, s%d, 0x%x" % (sB + c, sB + c, 0x1fffff if grp == 2 else 0xfffff))
            if grp == 1: e("s_or_b32 s%d, s%d, s68" % (sB + c, sB + c))
    e("s_add_u32 s%d, s%d, 1" % (sI, sI))
    e("s_cmp_lt_u32 s%d, 16" % sI)
    e("s_cbranch_scc1 L_loop")

    e("v_mov_b32 v%d, v%d" % (x, vL))
    e("v_permlane32_swap_b32 v%d, v%d" % (vL, x))
    e("v_add_f32 v%d, v%d, v%d" % (vL, vL, x))
    e("v_mov_b32 v%d, v%d" % (x, vL))
    e("v_permlane16_swap_b32 v%d, v%d" % (vL, x))
    e("v_add_f32 v%d, v%d, v%d" % (vL, vL, x))
    e("v_bfe_u32 v%d, v0, 2, 2" % (x + 1))
    e("v_lshlrev_b32 v%d, 2, v%d" % (x + 2, x + 1))
    e("s_lshl_b32 s42, s%d, 4" % sW)
    e("v_add_u32 v%d, s42, v%d" % (x + 3, x + 2))
    e("ds_write_b32 v%d, v%d" % (x + 3, vM))
    e("v_mul_u32_u24 v%d, %d, v%d" % (x + 6, LQ, x + 1))
    e("v_lshrrev_b32 v%d, 4, v0" % (x + 4))
    e("v_mul_u32_u24 v%d, 48, v%d" % (x + 4, x + 4))
    e("v_and_b32 v%d, 3, v0" % (x + 5))
    e("v_add3_u32 v%d, v%d, v%d, v%d" % (x + 6, x + 6, x + 4, x + 5))
    e("s_mul_i32 s42, s%d, %d" % (sW, LW))
    e("v_lshl_add_u32 v%d, v%d, 2, s42" % (x + 6, x + 6))
    e("s_waitcnt lgkmcnt(0)")
    e("s_barrier")
    for w in range(4): e("ds_read_b32 v%d, v%d offset:%d" % (vS + w, x + 2, w * 16))
    e("s_waitcnt vmcnt(0)")
    if not nocompute:
        for grpx in PVlist():
            for ins in grpx: e(ins)
    e("s_waitcnt lgkmcnt(0)")
    e("v_max3_f32 v%d, v%d, v%d, v%d" % (vS, vS, vS + 1, vS + 2))
    e("v_max_f32 v%d, v%d, v%d" % (vS, vS, vS + 3))
    e("v_sub_f32 v%d, v%d, v%d" % (x + 5, vM, vS))
    e("v_mul_f32 v%d, s%d, v%d" % (x + 5, sC, x + 5))
    e("v_exp_f32 v%d, v%d" % (x + 5, x + 5))
    e("v_mul_f32 v%d, v%d, v%d" % (vL, vL, x + 5))
    e("ds_write_b32 v%d, v%d offset:64" % (x + 3, vL))
    for i in range(16): e("v_mul_f32 v%d, v%d, v%d" % (vO + i, x + 5, vO + i))
    for h in range(2):
        for r in range(4):
            o = 128 + (h * 4 * 48 + 8 * r) * 4
            e("ds_write_b32 v%d, v%d offset:%d" % (x + 6, vO + (h * 2) * 4 + r, o))
            e("ds_write_b32 v%d, v%d offset:%d" % (x + 6, vO + (h * 2 + 1) * 4 + r, o + 16))
    e("s_waitcnt lgkmcnt(0)")
    e("s_barrier")
    e("s_cmp_lg_u32 s%d, 0" % sW)
    e("s_cbranch_scc1 L_end")
    Rd = vB
    T = vT - 16
    A = vO
    Bp = vB
    e("v_lshrrev_b32 v5, 3, v0")
    e("v_lshlrev_b32 v5, 6, v5")
    e("v_lshl_add_u32 v5, v0, 4, v5")
    for w in range(4):
        for j in range(4):
            e("ds_read_b128 %s, v5 offset:%d" % (v4(Rd + (w * 4 + j) * 4), 128 + w * LW + j * LQ * 4))
    e("v_mov_b32 v2, 0")
    for w in range(4):
        e("ds_read_b128 %s, v2 offset:%d" % (v4(T + w * 4), w * 16))
        e("ds_read_b128 %s, v2 offset:%d" % (v4(T + 16 + w * 4), 64 + w * 16))
    e("v_lshlrev_b32 v1, 4, v0")
    e("s_lshl_b32 s42, s%d, 14" % sHEAD)
    e("s_add_u32 s%d, s14, s42" % WS); e("s_addc_u32 s%d, s15, 0" % (WS + 1))
    e("s_mov_b32 s%d, 0x4000" % (WS + 2)); e("s_mov_b32 s%d, 0x20000" % (WS + 3))
    e("s_lshl_b32 s44, s%d, 13" % sROLE)
    e("s_xor_b32 s45, s44, 0x2000")
    e("s_lshl_b32 s46, s%d, 11" % sHEAD)
    e("s_add_u32 s%d, s10, s46" % OS); e("s_addc_u32 s%d, s11, 0" % (OS + 1))
    e("s_mov_b32 s%d, 0x800" % (OS + 2)); e("s_mov_b32 s%d, 0x20000" % (OS + 3))
    e("v_add_u32 v3, s44, v1")
    e("v_add_u32 v4, s45, v1")
    e("v_add_u32 v5, 0x1000, v3")
    e("s_waitcnt lgkmcnt(0)")
    for j in range(4):
        for c in range(4):
            r = lambda w: Rd + (w * 4 + j) * 4 + c
            e("v_add_f32 v%d, v%d, v%d" % (r(0), r(0), r(1)))
            e("v_add_f32 v%d, v%d, v%d" % (r(2), r(2), r(3)))
            e("v_add_f32 v%d, v%d, v%d" % (A + j * 4 + c, r(0), r(2)))
        e("buffer_store_dwordx4 %s, v3, %s, 0 offen offset:%d sc1" % (v4(A + j * 4), srd(WS), j * 1024))
    for q in range(4):
        e("v_max3_f32 v%d, v%d, v%d, v%d" % (A + 16 + q, T + q, T + 4 + q, T + 8 + q))
        e("v_max_f32 v%d, v%d, v%d" % (A + 16 + q, A + 16 + q, T + 12 + q))
        e("v_add_f32 v%d, v%d, v%d" % (T + 16 + q, T + 16 + q, T + 20 + q))
        e("v_add_f32 v%d, v%d, v%d" % (T + 24 + q, T + 24 + q, T + 28 + q))
        e("v_add_f32 v%d, v%d, v%d" % (A + 20 + q, T + 16 + q, T + 24 + q))
    e("buffer_store_dwordx4 %s, v5, %s, 0 offen sc1" % (v4(A + 16), srd(WS)))
    e("buffer_store_dwordx4 %s, v5, %s, 0 offen offset:1024 sc1" % (v4(A + 20), srd(WS)))
    e("s_lshr_b32 s42, s%d, 1" % sHEAD)
    e("s_lshl_b32 s42, s42, 2")
    e("s_and_b32 s43, s%d, 1" % sHEAD)
    e("s_lshl_b32 s43, s43, 4")
    e("s_lshl_b32 s47, 1, s43")
    e("v_mov_b32 v6, s42")
    e("v_mov_b32 v7, s47")
    e("v_add_u32 v5, 0x1000, v4")
    e("v_lshlrev_b32 v9, 3, v0")
    e("s_waitcnt vmcnt(0)")
    e("s_mov_b64 exec, 1")
    e("global_atomic_add v8, v6, v7, s[12:13] sc0")
    e("s_waitcnt vmcnt(0)")
    e("v_readfirstlane_b32 s48, v8")
    e("s_mov_b64 exec, -1")
    e("s_lshr_b32 s48, s48, s43")
    e("s_and_b32 s48, s48, 0xffff")
    e("s_cmp_eq_u32 s48, 0")
    e("s_cbranch_scc1 L_fin")
    e("buffer_load_dwordx4 %s, v5, %s, 0 offen sc1" % (v4(Bp + 16), srd(WS)))
    e("buffer_load_dwordx4 %s, v5, %s, 0 offen offset:1024 sc1" % (v4(Bp + 20), srd(WS)))
    for j in range(4):
        e("buffer_load_dwordx4 %s, v4, %s, 0 offen offset:%d sc1" % (v4(Bp + j * 4), srd(WS), j * 1024))
    e("s_waitcnt vmcnt(4)")
    for q in range(4):
        mt, fa, fb, dn = T + q * 4, T + q * 4 + 1, T + q * 4 + 2, T + q * 4 + 3
        e("v_max_f32 v%d, v%d, v%d" % (mt, A + 16 + q, Bp + 16 + q))
        e("v_sub_f32 v%d, v%d, v%d" % (fa, A + 16 + q, mt))
        e("v_sub_f32 v%d, v%d, v%d" % (fb, Bp + 16 + q, mt))
        e("v_mul_f32 v%d, s%d, v%d" % (fa, sC, fa))
        e("v_mul_f32 v%d, s%d, v%d" % (fb, sC, fb))
        e("v_exp_f32 v%d, v%d" % (fa, fa))
        e("v_exp_f32 v%d, v%d" % (fb, fb))
        e("v_mul_f32 v%d, v%d, v%d" % (dn, A + 20 + q, fa))
        e("v_mul_f32 v%d, v%d, v%d" % (mt, Bp + 20 + q, fb))
        e("v_add_f32 v%d, v%d, v%d" % (dn, dn, mt))
        e("v_rcp_f32 v%d, v%d" % (dn, dn))
    for q in range(4):
        mt, fa, fb, dn = T + q * 4, T + q * 4 + 1, T + q * 4 + 2, T + q * 4 + 3
        e("s_waitcnt vmcnt(%d)" % (3 - q + q))
        for c in range(4):
            e("v_mul_f32 v%d, v%d, v%d" % (A + q * 4 + c, A + q * 4 + c, fa))
            e("v_mul_f32 v%d, v%d, v%d" % (Bp + q * 4 + c, Bp + q * 4 + c, fb))
            e("v_add_f32 v%d, v%d, v%d" % (A + q * 4 + c, A + q * 4 + c, Bp + q * 4 + c))
            e("v_mul_f32 v%d, v%d, v%d" % (A + q * 4 + c, A + q * 4 + c, dn))
        e("v_cvt_pk_bf16_f32 v%d, v%d, v%d" % (10 + 2 * q, A + q * 4, A + q * 4 + 1))
        e("v_cvt_pk_bf16_f32 v%d, v%d, v%d" % (11 + 2 * q, A + q * 4 + 2, A + q * 4 + 3))
        e("buffer_store_dwordx2 v[%d:%d], v9, %s, 0 offen offset:%d" % (10 + 2 * q, 11 + 2 * q, srd(OS), q * 512) + " " + of)
    e("L_fin:")
    if stamp:
        e("s_waitcnt vmcnt(0)")
        e("s_memrealtime s[52:53]")
        e("s_getreg_b32 s54, hwreg(HW_REG_HW_ID)")
        e("s_getreg_b32 s55, hwreg(HW_REG_XCC_ID)")
        e("s_lshl_b32 s42, s2, 5")
        e("s_add_u32 s42, s42, 0x1000000")
        e("v_mov_b32 v1, s42")
        e("s_waitcnt lgkmcnt(0)")
        for i in range(6): e("v_mov_b32 v%d, s%d" % (2 + i, 50 + i))
        e("s_mov_b64 exec, 1")
        e("global_store_dwordx4 v1, v[2:5], s[14:15] " + sf)
        e("global_store_dwordx2 v1, v[6:7], s[14:15] offset:16 " + sf)
    e("L_end:")
    e("s_endpgm")
    e('.section .rodata,"a"'); e(".p2align 6")
    e(".amdhsa_kernel %s" % NAME)
    e("  .amdhsa_next_free_vgpr 264")
    e("  .amdhsa_next_free_sgpr 72")
    e("  .amdhsa_accum_offset %d" % ACC)
    e("  .amdhsa_group_segment_fixed_size 0")
    e("  .amdhsa_kernarg_size 48")
    e("  .amdhsa_user_sgpr_count 2")
    e("  .amdhsa_user_sgpr_kernarg_segment_ptr 1")
    e("  .amdhsa_system_sgpr_workgroup_id_x 1")
    e(".end_amdhsa_kernel")
    L = fix_hazards(L)
    txt = "\n".join(l if (l.startswith(";") or l.startswith(".") or l.endswith(":") or l.startswith("  .")) else "    " + l.rstrip() for l in L) + "\n"
    assert hz.check_text(txt) == 0
    return txt

if __name__ == "__main__":
    for spec in sys.argv[1:]:
        name, _, rest = spec.partition(":")
        kw = {}
        for kv in rest.split(","):
            if not kv: continue
            k, v = kv.split("=")
            kw[k] = v.replace("+", " ") if k in ("flags", "kf", "vf", "of", "sf") else int(v)
        open(name if name.endswith(".s") else name + ".s", "w").write(gen(**kw))
```

```python
import sys
import hz
from gen2 import fix_hazards
NAME = "standalone__mha_softmax__sampling_kernel"

def gen(N=5, NV=None, grp=2, flags="nt", stamp=0, px=1, of="", half=0):
    NK = N; NV = N if NV is None else NV
    L = []; e = L.append
    NW = 4; W = NW * grp
    LQ = 388; SW = 8192
    LDS = 128 + 4 * SW
    e("; @launch grid=(256,1,1) block=(256,1,1) lds=%d" % LDS)
    e('.amdgcn_target "amdgcn-amd-amdhsa--gfx950"')
    e(".text"); e(".globl %s" % NAME); e(".p2align 8"); e(".type %s,@function" % NAME); e("%s:" % NAME)
    KS, VS, QS, OS, WS = 16, 20, 24, 28, 32
    sW, sI, sC, sLO, sHI, sHEAD, sROLE = 36, 37, 38, 39, 40, 41, 49
    sB = 56; sM = 60; sB0 = 68
    vK, vV, vM, vL = 1, 2, 3, 4
    x = 5
    vS = 12; vA = 20; vP = 28; vPb = 32; vT = 48; vO = 64; vQ = 80; vB = [88, 152]
    vSW, vSR, vMC, vMA, vOA = 216, 217, 218, 219, 220
    kB = vB[1]
    def srd(n): return "s[%d:%d]" % (n, n + 3)
    def v4(n): return "v[%d:%d]" % (n, n + 3)

    e("s_cmp_ge_u32 s2, 256")
    e("s_cbranch_scc1 L_end")
    e("s_load_dwordx4 s[4:7], s[0:1], 0")
    e("s_load_dwordx4 s[8:11], s[0:1], 16")
    e("s_load_dwordx4 s[12:15], s[0:1], 32")
    if stamp: e("s_memrealtime s[50:51]")
    e("v_lshrrev_b32 v7, 6, v0")
    e("v_and_b32 v0, 63, v0")
    e("v_readfirstlane_b32 s%d, v7" % sW)
    e("v_lshrrev_b32 v9, 4, v0")
    e("v_and_b32 v10, 3, v0")
    e("v_bfe_u32 v11, v0, 2, 2")
    e("v_lshlrev_b32 v%d, 9, v11" % vK)
    e("v_lshl_add_u32 v%d, v9, 6, v%d" % (vK, vK))
    e("v_lshl_add_u32 v%d, v10, 4, v%d" % (vK, vK))
    tb = px.bit_length() - 1
    e("s_xor_b32 s44, s2, %d" % px)
    e("s_min_u32 s45, s44, s2")
    e("s_cmp_gt_u32 s2, s44")
    e("s_cselect_b32 s%d, 1, 0" % sROLE)
    e("s_lshr_b32 s46, s45, %d" % (tb + 1))
    e("s_lshl_b32 s46, s46, %d" % tb)
    e("s_and_b32 s45, s45, %d" % ((1 << tb) - 1))
    e("s_or_b32 s%d, s45, s46" % sHEAD)
    e("s_lshl_b32 s43, s%d, 21" % sHEAD)
    e("s_lshl_b32 s44, s%d, 11" % sHEAD)
    if grp == 2:
        e("s_lshl_b32 s45, s%d, 2" % sROLE)
        e("s_add_u32 s45, s45, s%d" % sW)
        e("s_lshl_b32 s%d, s45, 12" % sB0)
    else:
        e("s_lshl_b32 s45, s%d, 20" % sROLE)
        e("s_lshl_b32 s46, s%d, 12" % sW)
        e("s_add_u32 s%d, s45, s46" % sB0)
    def initB():
        for c in range(4): e("s_add_u32 s%d, s%d, %d" % (sB + c, sB0, c * W * 4096))
    def stepB():
        for c in range(4): e("s_add_u32 s%d, s%d, %d" % (sB + c, sB + c, W * 4 * 4096))
    initB()
    for s in (KS, VS):
        e("s_mov_b32 s%d, 0x200000" % (s + 2)); e("s_mov_b32 s%d, 0x20000" % (s + 3))
    e("s_mov_b32 s%d, 0x800" % (QS + 2)); e("s_mov_b32 s%d, 0x20000" % (QS + 3))
    e("s_waitcnt lgkmcnt(0)")
    e("s_add_u32 s%d, s6, s43" % KS); e("s_addc_u32 s%d, s7, 0" % (KS + 1))
    e("s_add_u32 s%d, s4, s44" % QS); e("s_addc_u32 s%d, s5, 0" % (QS + 1))
    for h in range(2):
        e("buffer_load_dwordx4 %s, v%d, %s, 0 offen offset:%d" % (v4(vQ + 4 * h), vK, srd(QS), h * 256))
    setup = []
    a = setup.append
    a("s_add_u32 s%d, s8, s43" % VS); a("s_addc_u32 s%d, s9, 0" % (VS + 1))
    a("v_and_b32 v8, 15, v0")
    a("v_lshlrev_b32 v%d, 9, v9" % vV)
    a("v_lshl_add_u32 v%d, v8, 4, v%d" % (vV, vV))
    a("s_mov_b32 s%d, 0x3db8aa3b" % sC)
    a("s_mov_b32 s%d, 0x05040100" % sLO)
    a("s_mov_b32 s%d, 0x07060302" % sHI)
    for b in range(4):
        a("s_mov_b32 s%d, 0x%x" % (sM + 2 * b, 0x11111111 << b)); a("s_mov_b32 s%d, 0x%x" % (sM + 2 * b + 1, 0x11111111 << b))
    a("v_mov_b32 v%d, 0xff800000" % vM)
    a("v_mov_b32 v%d, 0" % vL)
    for i in range(16): a("v_mov_b32 v%d, 0" % (vO + i))
    a("s_lshl_b32 s42, s%d, 13" % sW)
    a("s_add_u32 s42, s42, 128")
    a("v_lshrrev_b32 v8, 2, v0")
    a("v_lshl_add_u32 v%d, v8, 5, s42" % vSW)
    a("v_mov_b32 v%d, v%d" % (vSR, vSW))
    a("v_mul_u32_u24 v8, %d, v11" % LQ)
    a("v_mul_u32_u24 v7, 48, v9")
    a("v_add3_u32 v8, v8, v7, v10")
    a("v_lshl_add_u32 v%d, v8, 2, s42" % vOA)
    a("s_lshl_b32 s42, s%d, 4" % sW)
    a("v_lshl_add_u32 v%d, v11, 2, s42" % vMA)

    def KR(t, h): return kB + (t * 2 + h) * 4
    def QK(t):
        ac = vA + 4 * (t % 2)
        return ["v_mfma_f32_16x16x32_bf16 %s, %s, %s, 0" % (v4(ac), v4(KR(t, 0)), v4(vQ)),
                "v_mfma_f32_16x16x32_bf16 %s, %s, %s, %s" % (v4(ac), v4(KR(t, 1)), v4(vQ + 4), v4(ac))]
    def EX(t):
        ac = vA + 4 * (t % 2); s = vS + t
        r = ["v_mov_b32_dpp v%d, v%d quad_perm:[0,0,0,0] row_mask:0xf bank_mask:0xf" % (s, ac)]
        for j in range(1, 4):
            r.append("v_add_f32_dpp v%d, v%d, v%d quad_perm:[%d,%d,%d,%d] row_mask:0xf bank_mask:0xf" % (s, ac + j, s, j, j, j, j))
        if t % 2: r.append("v_max3_f32 v%d, v%d, v%d, v%d" % (vM, vM, s - 1, s))
        if t == 3: r.append("ds_write_b128 v%d, %s" % (vSW, v4(vS)))
        if t == 7:
            r.append("ds_write_b128 v%d, %s offset:16" % (vSW, v4(vS + 4)))
            r.append("v_add_u32 v%d, 512, v%d" % (vSW, vSW))
        return r
    NKs = NK + half; NVs = NV + half
    kcur = [[] for _ in range(16)]; kwrap = [[] for _ in range(16)]
    for t in range(8):
        for p, ops in ((2 * t + 1 + NKs, QK(t)), (2 * t + 2 + NKs, EX(t))):
            (kcur if p < 16 else kwrap)[p % 16] += ops
    def wait(n, s): e("s_waitcnt vmcnt(%d)" % (n - 1 + (half if s % 2 else 0)))
    def kslots(extra):
        for s in range(16):
            wait(NK, s)
            t = s >> 1; h = s & 1
            e("buffer_load_dwordx4 %s, v%d, %s, s%d offen offset:%d %s" % (v4(KR(t, h)), vK, srd(KS), sB + (t >> 1), (t & 1) * 2048 + h * 256, flags))
            for ins in extra[s]: e(ins)
    def spread(dst, ops, lo, hi):
        n = hi - lo + 1
        for k, o in enumerate(ops):
            dst[lo + (k * n) // len(ops)] += (o if isinstance(o, list) else [o])
    ex = [[] for _ in range(16)]
    spread(ex, setup, 2, min(NKs, 5))
    kslots([ex[s] + kcur[s] for s in range(16)])
    stepB()
    e("s_mov_b32 s%d, 1" % sI)
    e("L_kloop:")
    kslots([kwrap[s] + kcur[s] for s in range(16)])
    stepB()
    e("s_add_u32 s%d, s%d, 1" % (sI, sI))
    e("s_cmp_lt_u32 s%d, 16" % sI)
    e("s_cbranch_scc1 L_kloop")
    initB()

    seq = [(h, w, bb) for h in range(2) for w in range(4) for bb in range(2)]
    def R(b, h, i): return vB[b] + (i * 2 + h) * 4
    def perm(b, u):
        h, w, bb = seq[u]; t = vT + 4 * (u % 4)
        return ["v_perm_b32 v%d, v%d, v%d, s%d" % (t + p, R(b, h, 2 * p + 1) + w, R(b, h, 2 * p) + w, sHI if bb else sLO) for p in range(4)]
    def pvm(u):
        h, w, bb = seq[u]; ee = 2 * w + bb; t = vT + 4 * (u % 4); o = vO + (h * 2 + (ee >> 2)) * 4
        return ["v_mfma_f32_16x16x32_bf16 %s, %s, %s, %s" % (v4(o), v4(t), v4(vPb + 4 * (ee & 3)), v4(o))]
    def PV(b):
        r = [perm(b, 0)]
        for u in range(16): r.append((perm(b, u + 1) if u < 15 else []) + pvm(u))
        return r
    def masks():
        return ["v_cndmask_b32_e64 v%d, 0, v%d, s[%d:%d]" % (vPb + 4 * b + p, vP + p, sM + 2 * b, sM + 2 * b + 1) for b in range(4) for p in range(4)]
    def sread():
        return ["ds_read_b128 %s, v%d" % (v4(vS), vSR), "ds_read_b128 %s, v%d offset:16" % (v4(vS + 4), vSR), "v_add_u32 v%d, 512, v%d" % (vSR, vSR)]
    def soft():
        r = ["s_waitcnt lgkmcnt(0)"]; a = r.append
        for i in range(8): a("v_fma_f32 v%d, v%d, s%d, -v%d" % (vS + i, vS + i, sC, vMC))
        for i in range(8): a("v_exp_f32 v%d, v%d" % (vS + i, vS + i))
        a("v_add_f32 v%d, v%d, v%d" % (x + 3, vS, vS + 1))
        a("v_add_f32 v%d, v%d, v%d" % (x + 4, vS + 2, vS + 3))
        a("v_add_f32 v%d, v%d, v%d" % (x + 5, vS + 4, vS + 5))
        a("v_add_f32 v%d, v%d, v%d" % (x + 6, vS + 6, vS + 7))
        for p in range(4): a("v_cvt_pk_bf16_f32 v%d, v%d, v%d" % (vP + p, vS + 2 * p, vS + 2 * p + 1))
        a("v_add_f32 v%d, v%d, v%d" % (x + 3, x + 3, x + 4))
        a("v_add_f32 v%d, v%d, v%d" % (x + 5, x + 5, x + 6))
        a("v_add_f32 v%d, v%d, v%d" % (x + 3, x + 3, x + 5))
        a("v_add_f32 v%d, v%d, v%d" % (vL, vL, x + 3))
        return r
    def vslots(b, extra, first=False):
        for s in range(16):
            wait(NK if (first and s < NK) else NV, s) if not first else wait(min(NK, NV) if s <= NKs else NV, s)
            t = s >> 1; h = s & 1
            e("buffer_load_dwordx4 %s, v%d, %s, s%d offen offset:%d %s" % (v4(R(b, h, t)), vV, srd(VS), sB + (t >> 1), (t & 1) * 2048 + h * 256, flags))
            for ins in extra[s]: e(ins)
        stepB()
    ex = [list(kwrap[s]) for s in range(16)]
    mx = []
    a = mx.append
    a("v_mov_b32 v%d, v%d" % (x, vM))
    a("v_permlane32_swap_b32 v%d, v%d" % (vM, x))
    a("v_max_f32 v%d, v%d, v%d" % (vM, vM, x))
    a("v_mov_b32 v%d, v%d" % (x, vM))
    a("v_permlane16_swap_b32 v%d, v%d" % (vM, x))
    a("v_max_f32 v%d, v%d, v%d" % (vM, vM, x))
    a("ds_write_b32 v%d, v%d" % (vMA, vM))
    assert NKs + 4 <= 14
    ex[NKs + 1] += mx
    ex[NKs + 2] += ["s_waitcnt lgkmcnt(0)", "s_barrier", "v_and_b32 v%d, 12, v%d" % (x, vMA)] + \
                   ["ds_read_b32 v%d, v%d offset:%d" % (x + 1 + w, x, w * 16) for w in range(4)] + sread()
    ex[NKs + 3] += ["s_waitcnt lgkmcnt(2)", "v_max3_f32 v%d, v%d, v%d, v%d" % (vM, x + 1, x + 2, x + 3),
                    "v_max_f32 v%d, v%d, v%d" % (vM, vM, x + 4), "v_mul_f32 v%d, s%d, v%d" % (vMC, sC, vM)]
    spread(ex, soft(), NKs + 4, 15)
    vslots(0, ex, first=True)
    def vtile(b):
        ex = [[] for _ in range(16)]
        ex[0] += sread()
        spread(ex, masks(), 0, NVs - 2)
        spread(ex, PV(b ^ 1), NVs - 1, 15)
        spread(ex, soft(), NVs - 1, 15)
        vslots(b, ex)
    e("s_mov_b32 s%d, 0" % sI)
    e("L_vloop:")
    vtile(1); vtile(0)
    e("s_add_u32 s%d, s%d, 1" % (sI, sI))
    e("s_cmp_lt_u32 s%d, 7" % sI)
    e("s_cbranch_scc1 L_vloop")
    vtile(1)
    for ins in masks(): e(ins)
    e("v_mov_b32 v%d, v%d" % (x, vL))
    e("v_permlane32_swap_b32 v%d, v%d" % (vL, x))
    e("v_add_f32 v%d, v%d, v%d" % (vL, vL, x))
    e("v_mov_b32 v%d, v%d" % (x, vL))
    e("v_permlane16_swap_b32 v%d, v%d" % (vL, x))
    e("v_add_f32 v%d, v%d, v%d" % (vL, vL, x))
    e("ds_write_b32 v%d, v%d offset:64" % (vMA, vL))
    e("v_lshrrev_b32 v5, 3, v0")
    e("v_lshlrev_b32 v5, 6, v5")
    e("v_lshl_add_u32 v5, v0, 4, v5")
    e("v_lshlrev_b32 v1, 4, v0")
    e("s_lshl_b32 s42, s%d, 14" % sHEAD)
    e("s_add_u32 s%d, s14, s42" % WS); e("s_addc_u32 s%d, s15, 0" % (WS + 1))
    e("s_mov_b32 s%d, 0x4000" % (WS + 2)); e("s_mov_b32 s%d, 0x20000" % (WS + 3))
    e("s_lshl_b32 s44, s%d, 13" % sROLE)
    e("s_xor_b32 s45, s44, 0x2000")
    e("s_lshl_b32 s46, s%d, 11" % sHEAD)
    e("s_add_u32 s%d, s10, s46" % OS); e("s_addc_u32 s%d, s11, 0" % (OS + 1))
    e("s_mov_b32 s%d, 0x800" % (OS + 2)); e("s_mov_b32 s%d, 0x20000" % (OS + 3))
    e("v_add_u32 v6, s44, v1")
    e("v_add_u32 v7, s45, v1")
    e("v_add_u32 v8, 0x1000, v6")
    e("v_add_u32 v9, 0x1000, v7")
    e("s_lshr_b32 s42, s%d, 1" % sHEAD)
    e("s_lshl_b32 s42, s42, 2")
    e("s_and_b32 s43, s%d, 1" % sHEAD)
    e("s_lshl_b32 s43, s43, 4")
    e("s_lshl_b32 s47, 1, s43")
    e("v_mov_b32 v10, s42")
    e("v_mov_b32 v11, s47")
    e("v_lshlrev_b32 v2, 3, v0")
    e("v_mov_b32 v1, 0")
    e("s_waitcnt vmcnt(0)")
    for g in PV(1):
        for ins in g: e(ins)
    for h in range(2):
        for aa in range(2):
            for r in range(4):
                e("ds_write_b32 v%d, v%d offset:%d" % (vOA, vO + (h * 2 + aa) * 4 + r, (h * 4 * 48 + 8 * r + 4 * aa) * 4))
    e("s_waitcnt lgkmcnt(0)")
    e("s_barrier")
    e("s_cmp_lg_u32 s%d, 0" % sW)
    e("s_cbranch_scc1 L_end")
    Rd = vB[0]; T = 32; A = vO; Bp = vB[1]
    for j in range(4):
        for w in range(4):
            e("ds_read_b128 %s, v5 offset:%d" % (v4(Rd + (w * 4 + j) * 4), 128 + w * SW + j * LQ * 4))
    for w in range(4):
        e("ds_read_b128 %s, v1 offset:%d" % (v4(T + w * 4), w * 16))
        e("ds_read_b128 %s, v1 offset:%d" % (v4(T + 16 + w * 4), 64 + w * 16))
    for j in range(4):
        e("s_waitcnt lgkmcnt(%d)" % min(15, 8 + 12 - 4 * j))
        for c in range(4):
            r = lambda w: Rd + (w * 4 + j) * 4 + c
            e("v_add_f32 v%d, v%d, v%d" % (r(0), r(0), r(1)))
            e("v_add_f32 v%d, v%d, v%d" % (r(2), r(2), r(3)))
            e("v_add_f32 v%d, v%d, v%d" % (A + j * 4 + c, r(0), r(2)))
        e("buffer_store_dwordx4 %s, v6, %s, 0 offen offset:%d sc1" % (v4(A + j * 4), srd(WS), j * 1024))
    e("s_waitcnt lgkmcnt(0)")
    for q in range(4):
        e("v_max3_f32 v%d, v%d, v%d, v%d" % (A + 16 + q, T + q, T + 4 + q, T + 8 + q))
        e("v_max_f32 v%d, v%d, v%d" % (A + 16 + q, A + 16 + q, T + 12 + q))
        e("v_add_f32 v%d, v%d, v%d" % (T + 16 + q, T + 16 + q, T + 20 + q))
        e("v_add_f32 v%d, v%d, v%d" % (T + 24 + q, T + 24 + q, T + 28 + q))
        e("v_add_f32 v%d, v%d, v%d" % (A + 20 + q, T + 16 + q, T + 24 + q))
    e("buffer_store_dwordx4 %s, v8, %s, 0 offen sc1" % (v4(A + 16), srd(WS)))
    e("buffer_store_dwordx4 %s, v8, %s, 0 offen offset:1024 sc1" % (v4(A + 20), srd(WS)))
    e("s_waitcnt vmcnt(0)")
    e("s_mov_b64 exec, 1")
    e("global_atomic_add v12, v10, v11, s[12:13] sc0")
    e("s_waitcnt vmcnt(0)")
    e("v_readfirstlane_b32 s48, v12")
    e("s_mov_b64 exec, -1")
    e("s_lshr_b32 s48, s48, s43")
    e("s_and_b32 s48, s48, 0xffff")
    e("s_cmp_eq_u32 s48, 0")
    e("s_cbranch_scc1 L_fin")
    e("buffer_load_dwordx4 %s, v9, %s, 0 offen sc1" % (v4(Bp + 16), srd(WS)))
    e("buffer_load_dwordx4 %s, v9, %s, 0 offen offset:1024 sc1" % (v4(Bp + 20), srd(WS)))
    for j in range(4):
        e("buffer_load_dwordx4 %s, v7, %s, 0 offen offset:%d sc1" % (v4(Bp + j * 4), srd(WS), j * 1024))
    e("s_waitcnt vmcnt(4)")
    for q in range(4):
        mt, fa, fb, dn = T + q * 4, T + q * 4 + 1, T + q * 4 + 2, T + q * 4 + 3
        e("v_max_f32 v%d, v%d, v%d" % (mt, A + 16 + q, Bp + 16 + q))
        e("v_sub_f32 v%d, v%d, v%d" % (fa, A + 16 + q, mt))
        e("v_sub_f32 v%d, v%d, v%d" % (fb, Bp + 16 + q, mt))
        e("v_mul_f32 v%d, s%d, v%d" % (fa, sC, fa))
        e("v_mul_f32 v%d, s%d, v%d" % (fb, sC, fb))
        e("v_exp_f32 v%d, v%d" % (fa, fa))
        e("v_exp_f32 v%d, v%d" % (fb, fb))
        e("v_mul_f32 v%d, v%d, v%d" % (dn, A + 20 + q, fa))
        e("v_mul_f32 v%d, v%d, v%d" % (mt, Bp + 20 + q, fb))
        e("v_add_f32 v%d, v%d, v%d" % (dn, dn, mt))
        e("v_rcp_f32 v%d, v%d" % (dn, dn))
    for q in range(4):
        mt, fa, fb, dn = T + q * 4, T + q * 4 + 1, T + q * 4 + 2, T + q * 4 + 3
        e("s_waitcnt vmcnt(3)")
        for c in range(4):
            e("v_mul_f32 v%d, v%d, v%d" % (A + q * 4 + c, A + q * 4 + c, fa))
            e("v_mul_f32 v%d, v%d, v%d" % (Bp + q * 4 + c, Bp + q * 4 + c, fb))
            e("v_add_f32 v%d, v%d, v%d" % (A + q * 4 + c, A + q * 4 + c, Bp + q * 4 + c))
            e("v_mul_f32 v%d, v%d, v%d" % (A + q * 4 + c, A + q * 4 + c, dn))
        e("v_cvt_pk_bf16_f32 v%d, v%d, v%d" % (12 + 2 * q, A + q * 4, A + q * 4 + 1))
        e("v_cvt_pk_bf16_f32 v%d, v%d, v%d" % (13 + 2 * q, A + q * 4 + 2, A + q * 4 + 3))
        e("buffer_store_dwordx2 v[%d:%d], v2, %s, 0 offen offset:%d %s" % (12 + 2 * q, 13 + 2 * q, srd(OS), q * 512, of))
    e("L_fin:")
    if stamp:
        e("s_waitcnt vmcnt(0)")
        e("s_memrealtime s[52:53]")
        e("s_getreg_b32 s54, hwreg(HW_REG_HW_ID)")
        e("s_getreg_b32 s55, hwreg(HW_REG_XCC_ID)")
        e("s_lshl_b32 s42, s2, 5")
        e("s_add_u32 s42, s42, 0x1000000")
        e("v_mov_b32 v1, s42")
        e("s_waitcnt lgkmcnt(0)")
        for i in range(6): e("v_mov_b32 v%d, s%d" % (2 + i, 50 + i))
        e("s_mov_b64 exec, 1")
        e("global_store_dwordx4 v1, v[2:5], s[14:15]")
        e("global_store_dwordx2 v1, v[6:7], s[14:15] offset:16")
    e("L_end:")
    e("s_endpgm")
    e('.section .rodata,"a"'); e(".p2align 6")
    e(".amdhsa_kernel %s" % NAME)
    e("  .amdhsa_next_free_vgpr 264")
    e("  .amdhsa_next_free_sgpr 72")
    e("  .amdhsa_accum_offset 256")
    e("  .amdhsa_group_segment_fixed_size 0")
    e("  .amdhsa_kernarg_size 48")
    e("  .amdhsa_user_sgpr_count 2")
    e("  .amdhsa_user_sgpr_kernarg_segment_ptr 1")
    e("  .amdhsa_system_sgpr_workgroup_id_x 1")
    e(".end_amdhsa_kernel")
    L = fix_hazards(L)
    txt = "\n".join(l if (l.startswith(";") or l.startswith(".") or l.endswith(":") or l.startswith("  .")) else "    " + l.rstrip() for l in L) + "\n"
    assert hz.check_text(txt) == 0
    return txt

if __name__ == "__main__":
    for spec in sys.argv[1:]:
        name, _, rest = spec.partition(":")
        kw = {}
        for kv in rest.split(","):
            if not kv: continue
            k, v = kv.split("=")
            kw[k] = v.replace("+", " ") if k in ("flags", "of") else int(v)
        open(name if name.endswith(".s") else name + ".s", "w").write(gen(**kw))
```

```python
import re
def regs(tok):
    tok = tok.strip()
    neg = tok.lstrip('-')
    m = re.fullmatch(r'([vas])\[(\d+):(\d+)\]', neg)
    if m: return [(m.group(1), i) for i in range(int(m.group(2)), int(m.group(3)) + 1)]
    m = re.fullmatch(r'([vas])(\d+)', neg)
    if m: return [(m.group(1), int(m.group(2)))]
    if neg == 'vcc': return [('s', 'vcc')]
    if neg == 'exec': return [('s', 'exec')]
    if neg == 'm0': return [('s', 'm0')]
    return []
TRANS = ('v_exp_f32', 'v_rcp_f32', 'v_log_f32', 'v_rsq_f32', 'v_sqrt_f32')
def parse(line):
    skip = '; may be skipped' in line
    d = parse0(line)
    if d and skip: d['states'] = 0
    return d
def parse0(line):
    line = line.split(';')[0].strip()
    if not line or line.endswith(':') or line.startswith('.'): return None
    op, _, rest = line.partition(' ')
    mods0 = ''
    m_ = re.search(r'\s(quad_perm:|row_|op_sel|neg_lo|neg_hi)', rest)
    if m_: mods0 = rest[m_.start():]; rest = rest[:m_.start()]
    ops = [t.strip() for t in re.split(r',\s*', rest)] if rest else []
    mods = ''
    if ops:
        parts = ops[-1].split(' ')
        ops[-1] = parts[0]; mods = ' '.join(parts[1:]) + mods0
    d = dict(op=op, line=line, w=[], r=[], kind='other', states=1, dpp=('quad_perm' in mods or 'row_' in mods), mods=mods)
    if op == 's_nop': d['states'] = int(ops[0]) + 1; d['kind'] = 'nop'
    elif op.startswith('v_mfma'):
        d['kind'] = 'mfma'; d['w'] = regs(ops[0]); d['A'] = regs(ops[1]); d['B'] = regs(ops[2]); d['C'] = regs(ops[3])
        d['r'] = d['A'] + d['B'] + d['C']; d['passes'] = 8 if '32x32' in op else 4
    elif op.startswith('v_permlane'):
        d['kind'] = 'valu'; d['perm'] = True; d['w'] = regs(ops[0]) + regs(ops[1]); d['r'] = list(d['w'])
    elif op.startswith('v_cmp'):
        d['kind'] = 'valu'; d['w'] = regs(ops[0]); d['r'] = sum((regs(o) for o in ops[1:]), [])
    elif op.startswith('v_readfirstlane') or op.startswith('v_readlane'):
        d['kind'] = 'valu'; d['rl'] = True; d['w'] = regs(ops[0]); d['r'] = sum((regs(o) for o in ops[1:]), [])
    elif op.startswith('v_'):
        d['kind'] = 'valu'; d['w'] = regs(ops[0]); d['r'] = sum((regs(o) for o in ops[1:]), [])
        if op.startswith('v_fmac') or op.startswith('v_pk_fmac'): d['r'] += d['w']
        if d['dpp']: d['dppsrc'] = regs(ops[1])
        d['trans'] = op.replace('_e32', '').replace('_e64', '') in TRANS
    elif op.startswith('buffer_load') or op.startswith('global_load'):
        d['kind'] = 'vmem'
        if 'lds' in mods.split(): d['r'] = sum((regs(o) for o in ops), []) + [('s', 'm0')]
        else: d['w'] = regs(ops[0]); d['r'] = sum((regs(o) for o in ops[1:]), [])
    elif op.startswith('buffer_store') or op.startswith('global_store'):
        d['kind'] = 'vmem'; d['r'] = sum((regs(o) for o in ops), []); d['store'] = True
        d['data'] = regs(ops[0]) if op.startswith('buffer') else regs(ops[1]); d['wide'] = 'x4' in op or 'x3' in op
    elif op.startswith('global_atomic') or op.startswith('buffer_atomic'):
        d['kind'] = 'vmem'
        if 'sc0' in mods.split() and op.startswith('global'): d['w'] = regs(ops[0]); d['r'] = sum((regs(o) for o in ops[1:]), [])
        else: d['r'] = sum((regs(o) for o in ops), [])
    elif op.startswith('ds_read'):
        d['kind'] = 'ds'; d['w'] = regs(ops[0]); d['r'] = sum((regs(o) for o in ops[1:]), [])
    elif op.startswith('ds_'):
        d['kind'] = 'ds'; d['r'] = sum((regs(o) for o in ops), [])
    elif op.startswith('s_'):
        d['kind'] = 'salu'
        if op.startswith('s_cmp') or op.startswith('s_cbranch') or op.startswith('s_waitcnt') or op in ('s_barrier', 's_endpgm', 's_branch', 's_sleep', 's_setprio'):
            d['r'] = sum((regs(o) for o in ops), [])
        else:
            d['w'] = regs(ops[0]) if ops else []; d['r'] = sum((regs(o) for o in ops[1:]), [])
            if 'saveexec' in op: d['w'] += [('s', 'exec')]
    return d
def need(p, c):
    n = 0
    pw = set(p['w']); cr = set(c['r']); cw = set(c['w'])
    if p['kind'] == 'valu':
        vw = {x for x in pw if x[0] in 'va'}; sw = {x for x in pw if x[0] == 's'}
        if c['kind'] == 'mfma' and vw & cr: n = max(n, 2)
        if c.get('dpp') and vw & set(c.get('dppsrc', [])): n = max(n, 2)
        if c.get('perm') and vw & cr: n = max(n, 2)
        if c.get('rl') and vw & cr: n = max(n, 1)
        if p.get('trans') and c['kind'] in ('valu',) and not c.get('trans') and vw & cr: n = max(n, 1)
        if p.get('trans') and c['kind'] in ('valu',) and c.get('trans') and vw & cr: n = max(n, 1)
        if c['kind'] == 'vmem' and sw & cr: n = max(n, 5)
        if c['kind'] == 'valu' and sw & cr: n = max(n, 2)
    if p['kind'] == 'mfma':
        P = p['passes']; big = {4: 8, 8: 12}[P]
        if c['kind'] == 'mfma':
            if pw & (set(c['A']) | set(c['B'])): n = max(n, big)
            if pw & set(c['C']) and (c['C'] != p['w'] or c['passes'] != P): n = max(n, {4: 6, 8: 10}[P])
            if pw & cw and c['w'] != p['w']: n = max(n, big)
        elif c['kind'] in ('valu', 'vmem', 'ds') and (pw & cr or pw & cw): n = max(n, big)
        if c['kind'] == 'valu' and set(p['C']) & cw: n = max(n, {4: 3, 8: 7}[P])
    if p.get('store') and p.get('wide') and set(p['data']) & cw: n = max(n, 2 if c['kind'] == 'valu' else 1)
    if p['kind'] == 'salu' and ('s', 'm0') in pw and c['kind'] == 'vmem' and ('s', 'm0') in cr: n = max(n, 1)
    return n
def check_seq(lines, label=''):
    ins = [x for x in (parse(l) for l in lines) if x]
    bad = 0
    for j, c in enumerate(ins):
        dist = 0
        for i in range(j - 1, max(-1, j - 24), -1):
            p = ins[i]
            n = need(p, c)
            if n > dist:
                print('HAZARD[%s] need %d have %d:\n   %s\n   %s' % (label, n, dist, p['line'], c['line'])); bad += 1
            dist += p['states']
            if dist >= 20: break
    return bad
def check_text(text):
    lines = text.split('\n')
    bad = check_seq(lines, 'linear')
    labels = {l.strip()[:-1]: i for i, l in enumerate(lines) if l.strip().endswith(':') and not l.strip().startswith(';')}
    for i, l in enumerate(lines):
        m = re.match(r'\s*s_c?branch\S*\s+(\S+)', l)
        if m and m.group(1) in labels:
            t = labels[m.group(1)]
            bad += check_seq(lines[max(0, i - 30):i + 1] + lines[t:t + 30], 'edge ' + m.group(1))
    return bad
if __name__ == '__main__':
    import sys
    for f in sys.argv[1:]:
        print(f, 'hazards:', check_text(open(f).read()))
```

```python
import sys
import hz
from gen2 import fix_hazards
NAME = "standalone__mha_softmax__sampling_kernel"

def gen(lo=5, hi=7, per=4, k=16, dl=0, slp=2, flags="nt", stamp=0, of="", lastn=0, force=0, ctl=1, early=1, poll0=1, pslp=0, static=0, pubrole=1, pw=0, midbar=0):
    assert ctl == 1
    L = []; e = L.append
    W = 8
    LQ = 388; SW = 8192; RB = 256
    LDS = RB + 4 * SW
    e("; @launch grid=(256,1,1) block=(320,1,1) lds=%d" % LDS)
    e('.amdgcn_target "amdgcn-amd-amdhsa--gfx950"')
    e(".text"); e(".globl %s" % NAME); e(".p2align 8"); e(".type %s,@function" % NAME); e("%s:" % NAME)
    KS, VS, QS, OS, WS = 16, 20, 24, 28, 32
    sW, sI, sC, sLO, sHI, sHEAD, sROLE = 36, 37, 38, 39, 40, 41, 49
    sB = 56; sM = 60; sB0 = 68; sTR = 69
    vK, vV, vM, vL = 1, 2, 3, 4
    x = 5
    vS = 12; vA = 20; vP = 28; vPb = 32; vT = 48; vO = 64; vQ = 80; vB = [88, 152]
    vSW, vSR, vMC, vMA, vOA, vPR, vPA, vMD, vZ = 216, 217, 218, 219, 220, 221, 222, 223, 224
    kB = vB[1]
    TOTAL = 512 // per
    MAXP = TOTAL - 1 - len([q for q in range(lo) if q % per == per - 1])
    EXITP = MAXP - 8 // per + 1
    def srd(n): return "s[%d:%d]" % (n, n + 3)
    def v4(n): return "v[%d:%d]" % (n, n + 3)
    pts = []
    def ST(name):
        if stamp >= 2:
            e("s_memrealtime s[%d:%d]" % (72 + 2 * len(pts), 73 + 2 * len(pts))); pts.append(name)

    e("s_cmp_ge_u32 s2, 256")
    e("s_cbranch_scc1 L_end")
    e("s_load_dwordx4 s[4:7], s[0:1], 0")
    e("s_load_dwordx4 s[8:11], s[0:1], 16")
    e("s_load_dwordx4 s[12:15], s[0:1], 32")
    if stamp: e("s_memrealtime s[50:51]")
    e("v_lshrrev_b32 v7, 6, v0")
    e("v_and_b32 v0, 63, v0")
    e("v_readfirstlane_b32 s%d, v7" % sW)
    e("v_lshrrev_b32 v9, 4, v0")
    e("v_and_b32 v10, 3, v0")
    e("v_bfe_u32 v11, v0, 2, 2")
    e("v_lshlrev_b32 v%d, 9, v11" % vK)
    e("v_lshl_add_u32 v%d, v9, 6, v%d" % (vK, vK))
    e("v_lshl_add_u32 v%d, v10, 4, v%d" % (vK, vK))
    e("s_and_b32 s%d, s2, 1" % sROLE)
    e("s_lshr_b32 s%d, s2, 1" % sHEAD)
    e("s_cmp_eq_u32 s%d, 4" % sW)
    e("s_cbranch_scc1 L_helper")
    e("s_lshl_b32 s43, s%d, 21" % sHEAD)
    e("s_lshl_b32 s44, s%d, 11" % sHEAD)
    e("s_lshl_b32 s45, s%d, 2" % sROLE)
    e("s_add_u32 s45, s45, s%d" % sW)
    e("s_lshl_b32 s%d, s45, 12" % sB0)
    def initB():
        for c in range(4): e("s_add_u32 s%d, s%d, %d" % (sB + c, sB0, c * W * 4096))
    def stepB():
        for c in range(4): e("s_add_u32 s%d, s%d, %d" % (sB + c, sB + c, W * 4 * 4096))
    initB()
    for s in (KS, VS):
        e("s_mov_b32 s%d, 0x200000" % (s + 2)); e("s_mov_b32 s%d, 0x20000" % (s + 3))
    e("s_mov_b32 s%d, 0x800" % (QS + 2)); e("s_mov_b32 s%d, 0x20000" % (QS + 3))
    e("s_mov_b64 vcc, 0")
    e("s_waitcnt lgkmcnt(0)")
    ST("karg")
    e("s_add_u32 s%d, s6, s43" % KS); e("s_addc_u32 s%d, s7, 0" % (KS + 1))
    e("s_add_u32 s%d, s4, s44" % QS); e("s_addc_u32 s%d, s5, 0" % (QS + 1))
    setup = []
    a = setup.append
    for h in range(2):
        a("buffer_load_dwordx4 %s, v%d, %s, 0 offen offset:%d" % (v4(vQ + 4 * h), vK, srd(QS), h * 256))
    qloads = setup; setup = []; a = setup.append
    a("s_add_u32 s%d, s8, s43" % VS); a("s_addc_u32 s%d, s9, 0" % (VS + 1))
    a("v_and_b32 v8, 15, v0")
    a("v_lshlrev_b32 v%d, 9, v9" % vV)
    a("v_lshl_add_u32 v%d, v8, 4, v%d" % (vV, vV))
    a("s_mov_b32 s%d, 0x3db8aa3b" % sC)
    a("s_mov_b32 s%d, 0x05040100" % sLO)
    a("s_mov_b32 s%d, 0x07060302" % sHI)
    for b in range(4):
        a("s_mov_b32 s%d, 0x%x" % (sM + 2 * b, 0x11111111 << b)); a("s_mov_b32 s%d, 0x%x" % (sM + 2 * b + 1, 0x11111111 << b))
    a("v_mov_b32 v%d, 0xff800000" % vM)
    a("v_mov_b32 v%d, 0" % vL)
    for i in range(16): a("v_mov_b32 v%d, 0" % (vO + i))
    a("s_lshl_b32 s42, s%d, 13" % sW)
    a("s_add_u32 s42, s42, %d" % RB)
    a("v_lshrrev_b32 v8, 2, v0")
    a("v_lshl_add_u32 v%d, v8, 5, s42" % vSW)
    a("v_mov_b32 v%d, v%d" % (vSR, vSW))
    a("v_mul_u32_u24 v8, %d, v11" % LQ)
    a("v_mul_u32_u24 v7, 48, v9")
    a("v_add3_u32 v8, v8, v7, v10")
    a("v_lshl_add_u32 v%d, v8, 2, s42" % vOA)
    a("s_lshl_b32 s42, s%d, 2" % sW)
    a("v_lshl_add_u32 v%d, v11, 4, s42" % vMA)
    a("s_lshl_b32 s42, s%d, 4" % sW)
    a("v_mov_b32 v%d, s42" % vPA)
    a("v_mov_b32 v%d, 0" % vPR)
    a("v_mov_b32 v%d, 0" % vMD)
    a("v_mov_b32 v%d, 0" % vZ)
    a("s_barrier")

    def KR(t, h): return kB + (t * 2 + h) * 4
    def QK(t):
        ac = vA + 4 * (t % 2)
        return ["v_mfma_f32_16x16x32_bf16 %s, %s, %s, 0" % (v4(ac), v4(KR(t, 0)), v4(vQ)),
                "v_mfma_f32_16x16x32_bf16 %s, %s, %s, %s" % (v4(ac), v4(KR(t, 1)), v4(vQ + 4), v4(ac))]
    def EX(t):
        ac = vA + 4 * (t % 2); s = vS + t
        r = ["v_mov_b32_dpp v%d, v%d quad_perm:[0,0,0,0] row_mask:0xf bank_mask:0xf" % (s, ac)]
        for j in range(1, 4):
            r.append("v_add_f32_dpp v%d, v%d, v%d quad_perm:[%d,%d,%d,%d] row_mask:0xf bank_mask:0xf" % (s, ac + j, s, j, j, j, j))
        if t % 2: r.append("v_max3_f32 v%d, v%d, v%d, v%d" % (vM, vM, s - 1, s))
        if t == 3: r.append("ds_write_b128 v%d, %s" % (vSW, v4(vS)))
        if t == 7:
            r.append("ds_write_b128 v%d, %s offset:16" % (vSW, v4(vS + 4)))
            r.append("v_add_u32 v%d, 512, v%d" % (vSW, vSW))
        return r
    NS = hi if ctl else lo
    kcur = [[] for _ in range(16)]; kwrap = [[] for _ in range(16)]
    for t in range(8):
        for p, ops in ((2 * t + 1 + NS, QK(t)), (2 * t + 2 + NS, EX(t))):
            (kcur if p < 16 else kwrap)[p % 16] += ops
    lab = [0]
    def wait(extra=0, fixed=None):
        if fixed is not None:
            e("s_waitcnt vmcnt(%d)" % (fixed - 1 + extra)); return
        if ctl and hi != lo:
            e("s_cbranch_vccnz L_s%d" % lab[0])
            e("s_waitcnt vmcnt(%d) ; may be skipped" % (lo - 1 + extra))
            e("L_s%d:" % lab[0]); lab[0] += 1
            e("s_waitcnt vmcnt(%d)" % (hi - 1 + extra))
        else:
            e("s_waitcnt vmcnt(%d)" % (lo - 1 + extra))
    def ctlpt():
        if not ctl: return []
        return ["s_waitcnt lgkmcnt(0)", "v_readfirstlane_b32 s57x, v%d" % vMD, "v_add_u32 v%d, 1, v%d" % (vPR, vPR),
                "s_cmp_lg_u32 s57x, 0", "s_cselect_b64 vcc, -1, 0",
                "ds_write_b32 v%d, v%d" % (vPA, vPR), "ds_read_b32 v%d, v%d offset:4" % (vMD, vPA if pw else vZ)]
    def emit(lst):
        for ins in lst: e(ins.replace("s57x", "s70"))
    def kslots(extra, first=False):
        for s in range(16):
            if not (first and s < lo): wait(2 if (first and s - NS < 2) and False else 0)
            t = s >> 1; h = s & 1
            e("buffer_load_dwordx4 %s, v%d, %s, s%d offen offset:%d %s" % (v4(KR(t, h)), vK, srd(KS), sB + (t >> 1), (t & 1) * 2048 + h * 256, flags))
            if s % per == per - 1 and not (first and s < lo): emit(ctlpt())
            elif s % per == per - 1 and ctl: e("v_add_u32 v%d, 1, v%d" % (vPR, vPR)) if False else None
            emit(extra[s])
    def spread(dst, ops, lo_, hi_):
        n = hi_ - lo_ + 1
        for kk, o in enumerate(ops):
            dst[lo_ + (kk * n) // len(ops)] += (o if isinstance(o, list) else [o])
    emit(qloads)
    ex = [[] for _ in range(16)]
    ex[lo - 1] += setup
    if stamp >= 2: ex[NS + 1] = ["s_memrealtime s[74:75]"] + ex[NS + 1]; pts.append("k0landed")
    kslots([ex[s] + kcur[s] for s in range(16)], first=True)
    stepB()
    e("s_mov_b32 s%d, 1" % sI)
    e("L_kloop:")
    kslots([kwrap[s] + kcur[s] for s in range(16)])
    stepB()
    e("s_add_u32 s%d, s%d, 1" % (sI, sI))
    e("s_cmp_lt_u32 s%d, 16" % sI)
    e("s_cbranch_scc1 L_kloop")
    ST("kdone")
    initB()

    seq = [(h, w, bb) for h in range(2) for w in range(4) for bb in range(2)]
    def R(b, h, i): return vB[b] + (i * 2 + h) * 4
    def perm(b, u):
        h, w, bb = seq[u]; t = vT + 4 * (u % 4)
        return ["v_perm_b32 v%d, v%d, v%d, s%d" % (t + p, R(b, h, 2 * p + 1) + w, R(b, h, 2 * p) + w, sHI if bb else sLO) for p in range(4)]
    def pvm(u):
        h, w, bb = seq[u]; ee = 2 * w + bb; t = vT + 4 * (u % 4); o = vO + (h * 2 + (ee >> 2)) * 4
        return ["v_mfma_f32_16x16x32_bf16 %s, %s, %s, %s" % (v4(o), v4(t), v4(vPb + 4 * (ee & 3)), v4(o))]
    def PV(b, u0=0, u1=16):
        r = [perm(b, u0)]
        for u in range(u0, u1): r.append((perm(b, u + 1) if u + 1 < u1 else []) + pvm(u))
        return r
    def masks():
        return ["v_cndmask_b32_e64 v%d, 0, v%d, s[%d:%d]" % (vPb + 4 * b + p, vP + p, sM + 2 * b, sM + 2 * b + 1) for b in range(4) for p in range(4)]
    def sread():
        return ["ds_read_b128 %s, v%d" % (v4(vS), vSR), "ds_read_b128 %s, v%d offset:16" % (v4(vS + 4), vSR), "v_add_u32 v%d, 512, v%d" % (vSR, vSR)]
    def soft():
        r = ["s_waitcnt lgkmcnt(0)"]; a = r.append
        for i in range(8): a("v_fma_f32 v%d, v%d, s%d, -v%d" % (vS + i, vS + i, sC, vMC))
        for i in range(8): a("v_exp_f32 v%d, v%d" % (vS + i, vS + i))
        a("v_add_f32 v%d, v%d, v%d" % (x + 3, vS, vS + 1))
        a("v_add_f32 v%d, v%d, v%d" % (x + 4, vS + 2, vS + 3))
        a("v_add_f32 v%d, v%d, v%d" % (x + 5, vS + 4, vS + 5))
        a("v_add_f32 v%d, v%d, v%d" % (x + 6, vS + 6, vS + 7))
        for p in range(4): a("v_cvt_pk_bf16_f32 v%d, v%d, v%d" % (vP + p, vS + 2 * p, vS + 2 * p + 1))
        a("v_add_f32 v%d, v%d, v%d" % (x + 3, x + 3, x + 4))
        a("v_add_f32 v%d, v%d, v%d" % (x + 5, x + 5, x + 6))
        a("v_add_f32 v%d, v%d, v%d" % (x + 3, x + 3, x + 5))
        a("v_add_f32 v%d, v%d, v%d" % (vL, vL, x + 3))
        return r
    def vslots(b, extra, last=False):
        for s in range(16):
            if last and lastn and s >= NS: wait(fixed=lastn)
            else: wait()
            if last: h = s >> 3; t = s & 7
            else: t = s >> 1; h = s & 1
            e("buffer_load_dwordx4 %s, v%d, %s, s%d offen offset:%d %s" % (v4(R(b, h, t)), vV, srd(VS), sB + (t >> 1), (t & 1) * 2048 + h * 256, flags))
            if s % per == per - 1 and not (last and s >= 16 - per): emit(ctlpt())
            emit(extra[s])
        if not last: stepB()
    ex = [list(kwrap[s]) for s in range(16)]
    mx = []
    a = mx.append
    a("v_mov_b32 v%d, v%d" % (x, vM))
    a("v_permlane32_swap_b32 v%d, v%d" % (vM, x))
    a("v_max_f32 v%d, v%d, v%d" % (vM, vM, x))
    a("v_mov_b32 v%d, v%d" % (x, vM))
    a("v_permlane16_swap_b32 v%d, v%d" % (vM, x))
    a("v_max_f32 v%d, v%d, v%d" % (vM, vM, x))
    a("ds_write_b32 v%d, v%d offset:64" % (vMA, vM))
    a("v_mul_f32 v%d, s%d, v%d" % (vMC, sC, vM))
    assert NS + 2 <= 14
    ex[NS + 1] += sread() + mx
    spread(ex, soft(), NS + 2, 15)
    vslots(0, ex)
    def vtile(b, last=False):
        ex = [[] for _ in range(16)]
        ex[0] += sread()
        spread(ex, masks(), 0, NS - 2)
        spread(ex, PV(b ^ 1), NS - 1, 15)
        spread(ex, soft(), NS - 1, 15)
        vslots(b, ex, last)
    e("s_mov_b32 s%d, 0" % sI)
    e("L_vloop:")
    vtile(1); vtile(0)
    e("s_add_u32 s%d, s%d, 1" % (sI, sI))
    e("s_cmp_lt_u32 s%d, 7" % sI)
    e("s_cbranch_scc1 L_vloop")
    vtile(1, last=True)
    e("s_lshr_b32 s42, s%d, 1" % sHEAD)
    e("s_lshl_b32 s42, s42, 2")
    e("s_and_b32 s43, s%d, 1" % sHEAD)
    e("s_lshl_b32 s43, s43, 4")
    e("s_lshl_b32 s47, 1, s43")
    e("v_mov_b32 v10, s42")
    e("v_mov_b32 v11, s47")
    e("s_waitcnt lgkmcnt(0)")
    def claim():
        e("s_cmp_lg_u32 s%d, 0" % sW)
        e("s_cbranch_scc1 L_noclaim")
        e("s_mov_b64 exec, 1")
        e("global_atomic_add v%d, v10, v11, s[12:13] sc0" % vMD)
        e("s_mov_b64 exec, -1")
        e("L_noclaim:")
    if static: early = 0
    if early: claim()
    emit(masks())
    e("v_mov_b32 v%d, v%d" % (x, vL))
    e("v_permlane32_swap_b32 v%d, v%d" % (vL, x))
    e("v_add_f32 v%d, v%d, v%d" % (vL, vL, x))
    e("v_mov_b32 v%d, v%d" % (x, vL))
    e("v_permlane16_swap_b32 v%d, v%d" % (vL, x))
    e("v_add_f32 v%d, v%d, v%d" % (vL, vL, x))
    e("ds_write_b32 v%d, v%d offset:128" % (vMA, vL))
    e("v_lshrrev_b32 v5, 3, v0")
    e("v_lshlrev_b32 v5, 6, v5")
    e("v_lshl_add_u32 v5, v0, 4, v5")
    e("s_mul_i32 s42, s%d, %d" % (sW, LQ * 4))
    e("v_add_u32 v5, s42, v5")
    e("s_lshl_b32 s42, s%d, 4" % sW)
    e("v_mov_b32 v1, s42")
    e("s_lshl_b32 s42, s%d, 13" % sHEAD)
    e("s_add_u32 s42, s42, 0x10000")
    e("s_add_u32 s%d, s14, s42" % WS); e("s_addc_u32 s%d, s15, 0" % (WS + 1))
    e("s_mov_b32 s%d, 0x2000" % (WS + 2)); e("s_mov_b32 s%d, 0x20000" % (WS + 3))
    e("s_lshl_b32 s45, s%d, 10" % sW)
    e("v_lshl_add_u32 v6, v0, 4, s45")
    e("s_lshl_b32 s45, s%d, 7" % sW)
    e("s_add_u32 s45, s45, 0x1000")
    e("v_mov_b32 v8, s45")
    e("s_lshl_b32 s46, s%d, 11" % sHEAD)
    e("s_add_u32 s%d, s10, s46" % OS); e("s_addc_u32 s%d, s11, 0" % (OS + 1))
    e("s_mov_b32 s%d, 0x800" % (OS + 2)); e("s_mov_b32 s%d, 0x20000" % (OS + 3))
    e("s_lshl_b32 s45, s%d, 9" % sW)
    e("v_lshl_add_u32 v2, v0, 3, s45")
    Bp = vS
    if stamp >= 2: e("s_mov_b32 s70, 0")
    ST("lastissued")
    e("s_waitcnt vmcnt(8)")
    for g in PV(1, 0, 8): emit(g)
    if early:
        e("s_cmp_lg_u32 s%d, 0" % sW)
        e("s_cbranch_scc1 L_w0a")
        e("s_waitcnt vmcnt(1)")
        e("s_branch L_w0b")
        e("L_w0a:")
        e("s_waitcnt vmcnt(0)")
        e("L_w0b:")
    elif static:
        e("s_waitcnt vmcnt(0)")
        e("v_mov_b32 v%d, 0" % vMD)
        e("s_cmp_eq_u32 s%d, %d" % (sROLE, pubrole))
        e("s_cbranch_scc1 L_noclaim")
        e("global_load_dword v%d, v10, s[12:13] sc1" % vMD)
        e("L_noclaim:")
    else:
        e("s_waitcnt vmcnt(0)")
        claim()
    ST("vlanded")
    if stamp >= 2:
        e("s_waitcnt lgkmcnt(0)")
        e("v_mov_b32 v7, s80")
        e("ds_write_b32 v%d, v7 offset:12" % vPA)
    g2 = PV(1, 8, 16)
    wr = lambda h, aa: ["ds_write_b32 v%d, v%d offset:%d" % (vOA, vO + (h * 2 + aa) * 4 + r, (h * 4 * 48 + 8 * r + 4 * aa) * 4) for r in range(4)]
    for i, g in enumerate(g2):
        emit(g)
        if i == 2: emit(wr(0, 0))
        if i == 4: emit(wr(0, 1))
        if i == 8: emit(wr(1, 0))
    emit(wr(1, 1))
    if not static:
        e("s_waitcnt vmcnt(0)")
        e("v_readfirstlane_b32 s42, v%d" % vMD)
        e("s_lshr_b32 s42, s42, s43")
        e("v_mov_b32 v%d, s42" % vMD)
        e("ds_write_b32 v%d, v%d offset:8" % (vPA, vMD))
    e("s_waitcnt lgkmcnt(0)")
    e("s_barrier")
    ST("barrier")
    Rd = vB[0]; T = 32; A = vO
    if not static: e("ds_read_b32 v%d, v%d offset:8" % (vMD, vZ))
    e("ds_read_b128 %s, v1 offset:64" % v4(T))
    e("ds_read_b128 %s, v1 offset:128" % v4(T + 4))
    for w in range(4): e("ds_read_b128 %s, v5 offset:%d" % (v4(Rd + w * 4), RB + w * SW))
    if static:
        e("s_waitcnt vmcnt(0)")
        e("v_readfirstlane_b32 s%d, v%d" % (sTR, vMD))
        e("s_lshr_b32 s%d, s%d, s43" % (sTR, sTR))
        e("s_and_b32 s%d, s%d, 0x100" % (sTR, sTR))
        e("s_xor_b32 s42, s%d, %d" % (sROLE, pubrole))
        e("s_or_b32 s%d, s%d, s42" % (sTR, sTR))
    else:
        e("s_waitcnt lgkmcnt(%d)" % (0 if stamp >= 2 else 6))
        e("v_readfirstlane_b32 s%d, v%d" % (sTR, vMD))
    if force & 1: e("s_and_b32 s%d, s%d, 0xff" % (sTR, sTR))
    e("s_bitcmp1_b32 s%d, 8" % sTR)
    e("s_cbranch_scc0 L_nopre")
    e("buffer_load_dwordx2 v[%d:%d], v8, %s, 0 offen sc1" % (Bp + 4, Bp + 5, srd(WS)))
    e("buffer_load_dwordx4 %s, v6, %s, 0 offen sc1" % (v4(Bp), srd(WS)))
    e("L_nopre:")
    e("s_waitcnt lgkmcnt(%d)" % (0 if stamp >= 2 else 4))
    e("v_max3_f32 v%d, v%d, v%d, v%d" % (A + 4, T, T + 1, T + 2))
    e("v_max_f32 v%d, v%d, v%d" % (A + 4, A + 4, T + 3))
    for w in range(4): e("v_sub_f32 v%d, v%d, v%d" % (T + w, T + w, A + 4))
    for w in range(4): e("v_mul_f32 v%d, s%d, v%d" % (T + w, sC, T + w))
    for w in range(4): e("v_exp_f32 v%d, v%d" % (T + w, T + w))
    e("v_mul_f32 v%d, v%d, v%d" % (A + 5, T, T + 4))
    for w in range(1, 4): e("v_fmac_f32 v%d, v%d, v%d" % (A + 5, T + w, T + 4 + w))
    e("s_waitcnt lgkmcnt(0)")
    for c in range(4): e("v_mul_f32 v%d, v%d, v%d" % (A + c, T, Rd + c))
    for w in range(1, 4):
        for c in range(4): e("v_fmac_f32 v%d, v%d, v%d" % (A + c, T + w, Rd + w * 4 + c))
    ST("reduced")
    e("s_bitcmp1_b32 s%d, 8" % sTR)
    e("s_cbranch_scc1 L_have")
    e("s_and_b32 s42, s%d, 0xff" % sTR)
    e("s_cbranch_scc1 L_poll")
    e("buffer_store_dwordx4 %s, v6, %s, 0 offen sc1" % (v4(A), srd(WS)))
    e("s_mov_b64 exec, 1")
    e("buffer_store_dwordx2 v[%d:%d], v8, %s, 0 offen sc1" % (A + 4, A + 5, srd(WS)))
    e("v_lshlrev_b32 v11, 8, v11")
    e("s_waitcnt vmcnt(0)")
    e("s_barrier")
    e("s_cmp_lg_u32 s%d, 0" % sW)
    e("s_cbranch_scc1 L_fin")
    e("global_atomic_add v10, v11, s[12:13]")
    e("s_branch L_fin")
    e("L_poll:")
    if static: poll0 = 0
    if poll0:
        e("s_cmp_lg_u32 s%d, 0" % sW)
        e("s_cbranch_scc1 L_polled")
        e("s_mov_b64 exec, 1")
    e("L_poll1:")
    e("global_load_dword v12, v10, s[12:13] sc1")
    e("s_waitcnt vmcnt(0)")
    e("v_readfirstlane_b32 s42, v12")
    e("s_lshr_b32 s42, s42, s43")
    e("s_bitcmp1_b32 s42, 8")
    if pslp:
        e("s_cbranch_scc1 L_poll2")
        e("s_sleep %d" % pslp)
        e("s_branch L_poll1")
        e("L_poll2:")
    else:
        e("s_cbranch_scc0 L_poll1")
    if poll0:
        e("s_mov_b64 exec, -1")
        e("L_polled:")
        e("s_barrier")
    e("buffer_load_dwordx2 v[%d:%d], v8, %s, 0 offen sc1" % (Bp + 4, Bp + 5, srd(WS)))
    e("buffer_load_dwordx4 %s, v6, %s, 0 offen sc1" % (v4(Bp), srd(WS)))
    e("L_have:")
    e("s_waitcnt vmcnt(1)")
    mt, fa, fb, dn = T, T + 1, T + 2, T + 3
    e("v_max_f32 v%d, v%d, v%d" % (mt, A + 4, Bp + 4))
    e("v_sub_f32 v%d, v%d, v%d" % (fa, A + 4, mt))
    e("v_sub_f32 v%d, v%d, v%d" % (fb, Bp + 4, mt))
    e("v_mul_f32 v%d, s%d, v%d" % (fa, sC, fa))
    e("v_mul_f32 v%d, s%d, v%d" % (fb, sC, fb))
    e("v_exp_f32 v%d, v%d" % (fa, fa))
    e("v_exp_f32 v%d, v%d" % (fb, fb))
    e("v_mul_f32 v%d, v%d, v%d" % (dn, A + 5, fa))
    e("v_mul_f32 v%d, v%d, v%d" % (mt, Bp + 5, fb))
    e("v_add_f32 v%d, v%d, v%d" % (dn, dn, mt))
    e("v_rcp_f32 v%d, v%d" % (dn, dn))
    for c in range(4): e("v_mul_f32 v%d, v%d, v%d" % (A + c, A + c, fa))
    e("s_waitcnt vmcnt(0)")
    for c in range(4): e("v_mul_f32 v%d, v%d, v%d" % (Bp + c, Bp + c, fb))
    for c in range(4): e("v_add_f32 v%d, v%d, v%d" % (A + c, A + c, Bp + c))
    for c in range(4): e("v_mul_f32 v%d, v%d, v%d" % (A + c, A + c, dn))
    e("v_cvt_pk_bf16_f32 v10, v%d, v%d" % (A, A + 1))
    e("v_cvt_pk_bf16_f32 v11, v%d, v%d" % (A + 2, A + 3))
    e("buffer_store_dwordx2 v[10:11], v2, %s, 0 offen %s" % (srd(OS), of))
    if stamp >= 2: e("s_mov_b32 s70, 1")
    e("L_fin:")
    if stamp:
        e("s_mov_b64 exec, -1")
        e("s_waitcnt vmcnt(0)")
        e("s_barrier")
        e("s_cmp_lg_u32 s%d, 0" % sW)
        e("s_cbranch_scc1 L_end")
        e("s_memrealtime s[52:53]")
        e("s_getreg_b32 s54, hwreg(HW_REG_HW_ID)")
        e("s_getreg_b32 s55, hwreg(HW_REG_XCC_ID)")
        e("s_lshl_b32 s42, s2, 5")
        e("s_add_u32 s42, s42, 0x1000000")
        e("v_mov_b32 v1, s42")
        e("s_waitcnt lgkmcnt(0)")
        for i in range(6): e("v_mov_b32 v%d, s%d" % (2 + i, 50 + i))
        e("v_mov_b32 v8, s%d" % sTR)
        e("s_mov_b64 exec, 1")
        e("global_store_dwordx4 v1, v[2:5], s[14:15]")
        e("global_store_dwordx3 v1, v[6:8], s[14:15] offset:16")
        if stamp >= 2:
            e("s_lshl_b32 s42, s2, 6")
            e("s_add_u32 s42, s42, 0x1100000")
            e("v_mov_b32 v1, s42")
            for i in range(12): e("v_mov_b32 v%d, s%d" % (12 + i, 72 + 2 * i if i < len(pts) else (70 if i == 9 else 52)))
            for w in range(4): e("ds_read_b32 v%d, v%d offset:%d" % (24 + w, vZ, w * 16 + 12))
            e("s_waitcnt lgkmcnt(0)")
            e("global_store_dwordx4 v1, v[24:27], s[14:15] offset:48")
            for i in range(3): e("global_store_dwordx4 v1, v[%d:%d], s[14:15] offset:%d" % (12 + 4 * i, 15 + 4 * i, 16 * i))
            sys.stderr.write("pts: " + " ".join(pts) + "\n")
    e("s_endpgm")

    e("L_helper:")
    e("v_and_b32 v2, 3, v0"); e("v_lshlrev_b32 v2, 4, v2")
    e("v_mov_b32 v4, 0"); e("v_mov_b32 v5, 0")
    e("ds_write_b64 v2, v[4:5]")
    if not pw: e("v_mov_b32 v2, 0")
    e("s_and_b32 s45, s2, 7"); e("s_lshl_b32 s45, s45, 8")
    e("v_and_b32 v9, 31, v0"); e("v_lshl_add_u32 v9, v9, 2, s45")
    e("s_lshr_b32 s47, s2, 3")
    e("s_lshl_b32 s46, s47, 2"); e("s_add_u32 s46, s46, s45")
    e("v_mov_b32 v10, s46")
    e("s_waitcnt lgkmcnt(0)")
    e("global_load_dword v18, v9, s[14:15] nt")
    e("s_barrier")
    e("s_waitcnt vmcnt(0)")
    e("v_readlane_b32 s48, v18, s47")
    e("L_h:")
    e("s_sleep %d" % slp)
    e("ds_read_b32 v16, v2")
    e("s_waitcnt lgkmcnt(0)")
    if pw:
        for w in range(4): e("v_readlane_b32 s%d, v16, %d" % (60 + w, w))
        e("s_add_u32 s57, s60, s61"); e("s_add_u32 s58, s62, s63"); e("s_add_u32 s57, s57, s58")
        SC = 4
    else:
        e("v_readfirstlane_b32 s57, v16"); SC = 1
    e("s_cmp_lt_u32 s57, %d" % (2 * SC))
    e("s_cbranch_scc1 L_h")
    e("s_cmp_ge_u32 s57, %d" % (EXITP * SC))
    e("s_cselect_b32 s58, %d, s57" % (2 * TOTAL * SC))
    e("s_add_u32 s58, s58, s48")
    e("v_mov_b32 v16, s58")
    e("s_mov_b64 exec, 1")
    e("global_store_dword v10, v16, s[14:15]")
    e("s_mov_b64 exec, -1")
    e("s_cmp_ge_u32 s57, %d" % (EXITP * SC))
    e("s_cbranch_scc1 L_end")
    e("global_load_dword v17, v9, s[14:15] nt")
    if pw:
        for w in range(4):
            e("s_lshl_b32 s%d, s%d, 2" % (60 + w, 60 + w)); e("s_add_u32 s%d, s%d, %d" % (60 + w, 60 + w, dl))
        e("s_waitcnt vmcnt(0)")
        e("v_sub_u32 v17, v17, v18")
        for w in range(4):
            e("v_cmp_lt_u32 s[58:59], s%d, v17" % (60 + w))
            e("s_bcnt1_i32_b32 s58, s58")
            e("s_cmp_ge_u32 s58, %d" % k)
            e("s_cselect_b32 s58, 1, 0")
            e("v_writelane_b32 v19, s58, %d" % w)
        e("s_mov_b64 exec, 15")
    else:
        e("s_add_u32 s57, s57, %d" % dl)
        e("s_waitcnt vmcnt(0)")
        e("v_sub_u32 v17, v17, v18")
        e("v_cmp_lt_u32 s[58:59], s57, v17")
        e("s_bcnt1_i32_b32 s58, s58")
        e("s_cmp_ge_u32 s58, %d" % k)
        e("s_cselect_b32 s58, 1, 0")
        e("v_mov_b32 v19, s58")
    e("ds_write_b32 v2, v19 offset:4")
    if pw: e("s_mov_b64 exec, -1")
    e("s_branch L_h")
    e("L_end:")
    e("s_endpgm")
    e('.section .rodata,"a"'); e(".p2align 6")
    e(".amdhsa_kernel %s" % NAME)
    e("  .amdhsa_next_free_vgpr 232")
    e("  .amdhsa_next_free_sgpr %d" % (100 if stamp >= 2 else 72))
    e("  .amdhsa_accum_offset 232")
    e("  .amdhsa_group_segment_fixed_size 0")
    e("  .amdhsa_kernarg_size 48")
    e("  .amdhsa_user_sgpr_count 2")
    e("  .amdhsa_user_sgpr_kernarg_segment_ptr 1")
    e("  .amdhsa_system_sgpr_workgroup_id_x 1")
    e(".end_amdhsa_kernel")
    L = [l for l in L if l is not None]
    L = fix_hazards(L)
    txt = "\n".join(l if (l.startswith(";") or l.startswith(".") or l.endswith(":") or l.startswith("  .")) else "    " + l.rstrip() for l in L) + "\n"
    assert hz.check_text(txt) == 0
    return txt

if __name__ == "__main__":
    for spec in sys.argv[1:]:
        name, _, rest = spec.partition(":")
        kw = {}
        for kv in rest.split(","):
            if not kv: continue
            k, v = kv.split("=")
            kw[k] = v.replace("+", " ") if k in ("flags", "of") else int(v)
        open(name if name.endswith(".s") else name + ".s", "w").write(gen(**kw))
```

```python
import sys
import hz
from gen2 import fix_hazards
NAME = "standalone__mha_softmax__sampling_kernel"

def gen(lo=5, hi=7, per=4, k=16, dl=0, slp=2, flags="nt", stamp=0, of="", lastn=0, force=0, ctl=1, early=1, poll0=1, pslp=0, static=0, pubrole=1, pw=0, midbar=0):
    assert ctl == 1
    L = []; e = L.append
    W = 8
    LQ = 388; SW = 8192; RB = 256
    LDS = RB + 4 * SW
    e("; @launch grid=(256,1,1) block=(320,1,1) lds=%d" % LDS)
    e('.amdgcn_target "amdgcn-amd-amdhsa--gfx950"')
    e(".text"); e(".globl %s" % NAME); e(".p2align 8"); e(".type %s,@function" % NAME); e("%s:" % NAME)
    KS, VS, QS, OS, WS = 16, 20, 24, 28, 32
    sW, sI, sC, sLO, sHI, sHEAD, sROLE = 36, 37, 38, 39, 40, 41, 49
    sB = 56; sM = 60; sB0 = 68; sTR = 69
    vK, vV, vM, vL = 1, 2, 3, 4
    x = 5
    vS = 12; vA = 20; vP = 28; vPb = 32; vT = 48; vO = 64; vQ = 80; vB = [88, 152]
    vSW, vSR, vMC, vMA, vOA, vPR, vPA, vMD, vZ = 216, 217, 218, 219, 220, 221, 222, 223, 224
    kB = vB[1]
    TOTAL = 512 // per
    MAXP = TOTAL - 1 - len([q for q in range(lo) if q % per == per - 1])
    EXITP = MAXP - 8 // per + 1
    def srd(n): return "s[%d:%d]" % (n, n + 3)
    def v4(n): return "v[%d:%d]" % (n, n + 3)
    pts = []
    def ST(name):
        if stamp >= 2:
            e("s_memrealtime s[%d:%d]" % (72 + 2 * len(pts), 73 + 2 * len(pts))); pts.append(name)

    e("s_cmp_ge_u32 s2, 256")
    e("s_cbranch_scc1 L_end")
    e("s_load_dwordx4 s[4:7], s[0:1], 0")
    e("s_load_dwordx4 s[8:11], s[0:1], 16")
    e("s_load_dwordx4 s[12:15], s[0:1], 32")
    if stamp: e("s_memrealtime s[50:51]")
    e("v_lshrrev_b32 v7, 6, v0")
    e("v_and_b32 v0, 63, v0")
    e("v_readfirstlane_b32 s%d, v7" % sW)
    e("v_lshrrev_b32 v9, 4, v0")
    e("v_and_b32 v10, 3, v0")
    e("v_bfe_u32 v11, v0, 2, 2")
    e("v_lshlrev_b32 v%d, 9, v11" % vK)
    e("v_lshl_add_u32 v%d, v9, 6, v%d" % (vK, vK))
    e("v_lshl_add_u32 v%d, v10, 4, v%d" % (vK, vK))
    e("s_and_b32 s%d, s2, 1" % sROLE)
    e("s_lshr_b32 s%d, s2, 1" % sHEAD)
    e("s_cmp_eq_u32 s%d, 4" % sW)
    e("s_cbranch_scc1 L_helper")
    e("s_lshl_b32 s43, s%d, 21" % sHEAD)
    e("s_lshl_b32 s44, s%d, 11" % sHEAD)
    e("s_lshl_b32 s45, s%d, 2" % sROLE)
    e("s_add_u32 s45, s45, s%d" % sW)
    e("s_lshl_b32 s%d, s45, 12" % sB0)
    def initB():
        for c in range(4): e("s_add_u32 s%d, s%d, %d" % (sB + c, sB0, c * W * 4096))
    def stepB():
        for c in range(4): e("s_add_u32 s%d, s%d, %d" % (sB + c, sB + c, W * 4 * 4096))
    initB()
    for s in (KS, VS):
        e("s_mov_b32 s%d, 0x200000" % (s + 2)); e("s_mov_b32 s%d, 0x20000" % (s + 3))
    e("s_mov_b32 s%d, 0x800" % (QS + 2)); e("s_mov_b32 s%d, 0x20000" % (QS + 3))
    e("s_mov_b64 vcc, 0")
    e("s_waitcnt lgkmcnt(0)")
    ST("karg")
    e("s_add_u32 s%d, s6, s43" % KS); e("s_addc_u32 s%d, s7, 0" % (KS + 1))
    e("s_add_u32 s%d, s4, s44" % QS); e("s_addc_u32 s%d, s5, 0" % (QS + 1))
    setup = []
    a = setup.append
    for h in range(2):
        a("buffer_load_dwordx4 %s, v%d, %s, 0 offen offset:%d" % (v4(vQ + 4 * h), vK, srd(QS), h * 256))
    qloads = setup; setup = []; a = setup.append
    a("s_add_u32 s%d, s8, s43" % VS); a("s_addc_u32 s%d, s9, 0" % (VS + 1))
    a("v_and_b32 v8, 15, v0")
    a("v_lshlrev_b32 v%d, 9, v9" % vV)
    a("v_lshl_add_u32 v%d, v8, 4, v%d" % (vV, vV))
    a("s_mov_b32 s%d, 0x3db8aa3b" % sC)
    a("s_mov_b32 s%d, 0x05040100" % sLO)
    a("s_mov_b32 s%d, 0x07060302" % sHI)
    for b in range(4):
        a("s_mov_b32 s%d, 0x%x" % (sM + 2 * b, 0x11111111 << b)); a("s_mov_b32 s%d, 0x%x" % (sM + 2 * b + 1, 0x11111111 << b))
    a("v_mov_b32 v%d, 0xff800000" % vM)
    a("v_mov_b32 v%d, 0" % vL)
    for i in range(16): a("v_mov_b32 v%d, 0" % (vO + i))
    a("s_lshl_b32 s42, s%d, 13" % sW)
    a("s_add_u32 s42, s42, %d" % RB)
    a("v_lshrrev_b32 v8, 2, v0")
    a("v_lshl_add_u32 v%d, v8, 5, s42" % vSW)
    a("v_mov_b32 v%d, v%d" % (vSR, vSW))
    a("v_mul_u32_u24 v8, %d, v11" % LQ)
    a("v_mul_u32_u24 v7, 48, v9")
    a("v_add3_u32 v8, v8, v7, v10")
    a("v_lshl_add_u32 v%d, v8, 2, s42" % vOA)
    a("s_lshl_b32 s42, s%d, 2" % sW)
    a("v_lshl_add_u32 v%d, v11, 4, s42" % vMA)
    a("s_lshl_b32 s42, s%d, 4" % sW)
    a("v_mov_b32 v%d, s42" % vPA)
    a("v_mov_b32 v%d, 0" % vPR)
    a("v_mov_b32 v%d, 0" % vMD)
    a("v_mov_b32 v%d, 0" % vZ)
    a("s_barrier")

    def KR(t, h): return kB + (t * 2 + h) * 4
    def QK(t):
        ac = vA + 4 * (t % 2)
        return ["v_mfma_f32_16x16x32_bf16 %s, %s, %s, 0" % (v4(ac), v4(KR(t, 0)), v4(vQ)),
                "v_mfma_f32_16x16x32_bf16 %s, %s, %s, %s" % (v4(ac), v4(KR(t, 1)), v4(vQ + 4), v4(ac))]
    def EX(t):
        ac = vA + 4 * (t % 2); s = vS + t
        r = ["v_mov_b32_dpp v%d, v%d quad_perm:[0,0,0,0] row_mask:0xf bank_mask:0xf" % (s, ac)]
        for j in range(1, 4):
            r.append("v_add_f32_dpp v%d, v%d, v%d quad_perm:[%d,%d,%d,%d] row_mask:0xf bank_mask:0xf" % (s, ac + j, s, j, j, j, j))
        if t % 2: r.append("v_max3_f32 v%d, v%d, v%d, v%d" % (vM, vM, s - 1, s))
        if t == 3: r.append("ds_write_b128 v%d, %s" % (vSW, v4(vS)))
        if t == 7:
            r.append("ds_write_b128 v%d, %s offset:16" % (vSW, v4(vS + 4)))
            r.append("v_add_u32 v%d, 512, v%d" % (vSW, vSW))
        return r
    NS = hi if ctl else lo
    kcur = [[] for _ in range(16)]; kwrap = [[] for _ in range(16)]
    for t in range(8):
        for p, ops in ((2 * t + 1 + NS, QK(t)), (2 * t + 2 + NS, EX(t))):
            (kcur if p < 16 else kwrap)[p % 16] += ops
    lab = [0]
    def wait(extra=0, fixed=None):
        if fixed is not None:
            e("s_waitcnt vmcnt(%d)" % (fixed - 1 + extra)); return
        if ctl and hi != lo:
            e("s_cbranch_vccnz L_s%d" % lab[0])
            e("s_waitcnt vmcnt(%d) ; may be skipped" % (lo - 1 + extra))
            e("L_s%d:" % lab[0]); lab[0] += 1
            e("s_waitcnt vmcnt(%d)" % (hi - 1 + extra))
        else:
            e("s_waitcnt vmcnt(%d)" % (lo - 1 + extra))
    def ctlpt():
        if not ctl: return []
        return ["s_waitcnt lgkmcnt(0)", "v_readfirstlane_b32 s57x, v%d" % vMD, "v_add_u32 v%d, 1, v%d" % (vPR, vPR),
                "s_cmp_lg_u32 s57x, 0", "s_cselect_b64 vcc, -1, 0",
                "ds_write_b32 v%d, v%d" % (vPA, vPR), "ds_read_b32 v%d, v%d offset:4" % (vMD, vPA if pw else vZ)]
    def emit(lst):
        for ins in lst: e(ins.replace("s57x", "s70"))
    def kslots(extra, first=False):
        for s in range(16):
            if not (first and s < lo): wait(2 if (first and s - NS < 2) and False else 0)
            t = s >> 1; h = s & 1
            e("buffer_load_dwordx4 %s, v%d, %s, s%d offen offset:%d %s" % (v4(KR(t, h)), vK, srd(KS), sB + (t >> 1), (t & 1) * 2048 + h * 256, flags))
            if s % per == per - 1 and not (first and s < lo): emit(ctlpt())
            elif s % per == per - 1 and ctl: e("v_add_u32 v%d, 1, v%d" % (vPR, vPR)) if False else None
            emit(extra[s])
    def spread(dst, ops, lo_, hi_):
        n = hi_ - lo_ + 1
        for kk, o in enumerate(ops):
            dst[lo_ + (kk * n) // len(ops)] += (o if isinstance(o, list) else [o])
    emit(qloads)
    ex = [[] for _ in range(16)]
    ex[lo - 1] += setup
    if stamp >= 2: ex[NS + 1] = ["s_memrealtime s[74:75]"] + ex[NS + 1]; pts.append("k0landed")
    kslots([ex[s] + kcur[s] for s in range(16)], first=True)
    stepB()
    e("s_mov_b32 s%d, 1" % sI)
    e("L_kloop:")
    kslots([kwrap[s] + kcur[s] for s in range(16)])
    stepB()
    e("s_add_u32 s%d, s%d, 1" % (sI, sI))
    e("s_cmp_lt_u32 s%d, 16" % sI)
    e("s_cbranch_scc1 L_kloop")
    ST("kdone")
    initB()

    seq = [(h, w, bb) for h in range(2) for w in range(4) for bb in range(2)]
    def R(b, h, i): return vB[b] + (i * 2 + h) * 4
    def perm(b, u):
        h, w, bb = seq[u]; t = vT + 4 * (u % 4)
        return ["v_perm_b32 v%d, v%d, v%d, s%d" % (t + p, R(b, h, 2 * p + 1) + w, R(b, h, 2 * p) + w, sHI if bb else sLO) for p in range(4)]
    def pvm(u):
        h, w, bb = seq[u]; ee = 2 * w + bb; t = vT + 4 * (u % 4); o = vO + (h * 2 + (ee >> 2)) * 4
        return ["v_mfma_f32_16x16x32_bf16 %s, %s, %s, %s" % (v4(o), v4(t), v4(vPb + 4 * (ee & 3)), v4(o))]
    def PV(b, u0=0, u1=16):
        r = [perm(b, u0)]
        for u in range(u0, u1): r.append((perm(b, u + 1) if u + 1 < u1 else []) + pvm(u))
        return r
    def masks():
        return ["v_cndmask_b32_e64 v%d, 0, v%d, s[%d:%d]" % (vPb + 4 * b + p, vP + p, sM + 2 * b, sM + 2 * b + 1) for b in range(4) for p in range(4)]
    def sread():
        return ["ds_read_b128 %s, v%d" % (v4(vS), vSR), "ds_read_b128 %s, v%d offset:16" % (v4(vS + 4), vSR), "v_add_u32 v%d, 512, v%d" % (vSR, vSR)]
    def soft():
        r = ["s_waitcnt lgkmcnt(0)"]; a = r.append
        for i in range(8): a("v_fma_f32 v%d, v%d, s%d, -v%d" % (vS + i, vS + i, sC, vMC))
        for i in range(8): a("v_exp_f32 v%d, v%d" % (vS + i, vS + i))
        a("v_add_f32 v%d, v%d, v%d" % (x + 3, vS, vS + 1))
        a("v_add_f32 v%d, v%d, v%d" % (x + 4, vS + 2, vS + 3))
        a("v_add_f32 v%d, v%d, v%d" % (x + 5, vS + 4, vS + 5))
        a("v_add_f32 v%d, v%d, v%d" % (x + 6, vS + 6, vS + 7))
        for p in range(4): a("v_cvt_pk_bf16_f32 v%d, v%d, v%d" % (vP + p, vS + 2 * p, vS + 2 * p + 1))
        a("v_add_f32 v%d, v%d, v%d" % (x + 3, x + 3, x + 4))
        a("v_add_f32 v%d, v%d, v%d" % (x + 5, x + 5, x + 6))
        a("v_add_f32 v%d, v%d, v%d" % (x + 3, x + 3, x + 5))
        a("v_add_f32 v%d, v%d, v%d" % (vL, vL, x + 3))
        return r
    def vslots(b, extra, last=False):
        for s in range(16):
            if last and lastn and s >= NS: wait(fixed=lastn)
            else: wait()
            if last: h = s >> 3; t = s & 7
            else: t = s >> 1; h = s & 1
            e("buffer_load_dwordx4 %s, v%d, %s, s%d offen offset:%d %s" % (v4(R(b, h, t)), vV, srd(VS), sB + (t >> 1), (t & 1) * 2048 + h * 256, flags))
            if s % per == per - 1 and not (last and s >= 16 - per): emit(ctlpt())
            emit(extra[s])
        if not last: stepB()
    ex = [list(kwrap[s]) for s in range(16)]
    mx = []
    a = mx.append
    a("v_mov_b32 v%d, v%d" % (x, vM))
    a("v_permlane32_swap_b32 v%d, v%d" % (vM, x))
    a("v_max_f32 v%d, v%d, v%d" % (vM, vM, x))
    a("v_mov_b32 v%d, v%d" % (x, vM))
    a("v_permlane16_swap_b32 v%d, v%d" % (vM, x))
    a("v_max_f32 v%d, v%d, v%d" % (vM, vM, x))
    a("ds_write_b32 v%d, v%d offset:64" % (vMA, vM))
    a("v_mul_f32 v%d, s%d, v%d" % (vMC, sC, vM))
    assert NS + 2 <= 14
    ex[NS + 1] += sread() + mx
    spread(ex, soft(), NS + 2, 15)
    vslots(0, ex)
    def vtile(b, last=False):
        ex = [[] for _ in range(16)]
        ex[0] += sread()
        spread(ex, masks(), 0, NS - 2)
        spread(ex, PV(b ^ 1), NS - 1, 15)
        spread(ex, soft(), NS - 1, 15)
        vslots(b, ex, last)
    e("s_mov_b32 s%d, 0" % sI)
    e("L_vloop:")
    vtile(1); vtile(0)
    e("s_add_u32 s%d, s%d, 1" % (sI, sI))
    e("s_cmp_lt_u32 s%d, 7" % sI)
    e("s_cbranch_scc1 L_vloop")
    vtile(1, last=True)
    e("s_lshr_b32 s42, s%d, 1" % sHEAD)
    e("s_lshl_b32 s42, s42, 2")
    e("s_and_b32 s43, s%d, 1" % sHEAD)
    e("s_lshl_b32 s43, s43, 4")
    e("s_lshl_b32 s47, 1, s43")
    e("v_mov_b32 v10, s42")
    e("v_mov_b32 v11, s47")
    e("s_waitcnt lgkmcnt(0)")
    def claim():
        e("s_cmp_lg_u32 s%d, 0" % sW)
        e("s_cbranch_scc1 L_noclaim")
        e("s_mov_b64 exec, 1")
        e("global_atomic_add v%d, v10, v11, s[12:13] sc0" % vMD)
        e("s_mov_b64 exec, -1")
        e("L_noclaim:")
    if static: early = 0
    if early: claim()
    emit(masks())
    e("v_mov_b32 v%d, v%d" % (x, vL))
    e("v_permlane32_swap_b32 v%d, v%d" % (vL, x))
    e("v_add_f32 v%d, v%d, v%d" % (vL, vL, x))
    e("v_mov_b32 v%d, v%d" % (x, vL))
    e("v_permlane16_swap_b32 v%d, v%d" % (vL, x))
    e("v_add_f32 v%d, v%d, v%d" % (vL, vL, x))
    e("ds_write_b32 v%d, v%d offset:128" % (vMA, vL))
    e("v_lshrrev_b32 v5, 3, v0")
    e("v_lshlrev_b32 v5, 6, v5")
    e("v_lshl_add_u32 v5, v0, 4, v5")
    e("s_mul_i32 s42, s%d, %d" % (sW, LQ * 4))
    e("v_add_u32 v5, s42, v5")
    e("s_lshl_b32 s42, s%d, 4" % sW)
    e("v_mov_b32 v1, s42")
    e("s_lshl_b32 s42, s%d, 13" % sHEAD)
    e("s_add_u32 s42, s42, 0x10000")
    e("s_add_u32 s%d, s14, s42" % WS); e("s_addc_u32 s%d, s15, 0" % (WS + 1))
    e("s_mov_b32 s%d, 0x2000" % (WS + 2)); e("s_mov_b32 s%d, 0x20000" % (WS + 3))
    e("s_lshl_b32 s45, s%d, 10" % sW)
    e("v_lshl_add_u32 v6, v0, 4, s45")
    e("s_lshl_b32 s45, s%d, 7" % sW)
    e("s_add_u32 s45, s45, 0x1000")
    e("v_mov_b32 v8, s45")
    e("s_lshl_b32 s46, s%d, 11" % sHEAD)
    e("s_add_u32 s%d, s10, s46" % OS); e("s_addc_u32 s%d, s11, 0" % (OS + 1))
    e("s_mov_b32 s%d, 0x800" % (OS + 2)); e("s_mov_b32 s%d, 0x20000" % (OS + 3))
    e("s_lshl_b32 s45, s%d, 9" % sW)
    e("v_lshl_add_u32 v2, v0, 3, s45")
    Bp = vS
    if stamp >= 2: e("s_mov_b32 s70, 0")
    ST("lastissued")
    e("s_waitcnt vmcnt(8)")
    for g in PV(1, 0, 8): emit(g)
    if early:
        e("s_cmp_lg_u32 s%d, 0" % sW)
        e("s_cbranch_scc1 L_w0a")
        e("s_waitcnt vmcnt(1)")
        e("s_branch L_w0b")
        e("L_w0a:")
        e("s_waitcnt vmcnt(0)")
        e("L_w0b:")
    elif static:
        e("s_waitcnt vmcnt(0)")
        e("v_mov_b32 v%d, 0" % vMD)
        e("s_cmp_eq_u32 s%d, %d" % (sROLE, pubrole))
        e("s_cbranch_scc1 L_noclaim")
        e("global_load_dword v%d, v10, s[12:13] sc1" % vMD)
        e("L_noclaim:")
    else:
        e("s_waitcnt vmcnt(0)")
        claim()
    ST("vlanded")
    if stamp >= 2:
        e("s_waitcnt lgkmcnt(0)")
        e("v_mov_b32 v7, s80")
        e("ds_write_b32 v%d, v7 offset:12" % vPA)
    g2 = PV(1, 8, 16)
    wr = lambda h, aa: ["ds_write_b32 v%d, v%d offset:%d" % (vOA, vO + (h * 2 + aa) * 4 + r, (h * 4 * 48 + 8 * r + 4 * aa) * 4) for r in range(4)]
    for i, g in enumerate(g2):
        emit(g)
        if i == 2: emit(wr(0, 0))
        if i == 4: emit(wr(0, 1))
        if i == 8: emit(wr(1, 0))
    emit(wr(1, 1))
    if not static:
        e("s_waitcnt vmcnt(0)")
        e("v_readfirstlane_b32 s42, v%d" % vMD)
        e("s_lshr_b32 s42, s42, s43")
        e("v_mov_b32 v%d, s42" % vMD)
        e("ds_write_b32 v%d, v%d offset:8" % (vPA, vMD))
    e("s_waitcnt lgkmcnt(0)")
    e("s_barrier")
    ST("barrier")
    Rd = vB[0]; T = 32; A = vO
    if not static: e("ds_read_b32 v%d, v%d offset:8" % (vMD, vZ))
    e("ds_read_b128 %s, v1 offset:64" % v4(T))
    e("ds_read_b128 %s, v1 offset:128" % v4(T + 4))
    for w in range(4): e("ds_read_b128 %s, v5 offset:%d" % (v4(Rd + w * 4), RB + w * SW))
    if static:
        e("s_waitcnt vmcnt(0)")
        e("v_readfirstlane_b32 s%d, v%d" % (sTR, vMD))
        e("s_lshr_b32 s%d, s%d, s43" % (sTR, sTR))
        e("s_and_b32 s%d, s%d, 0x100" % (sTR, sTR))
        e("s_xor_b32 s42, s%d, %d" % (sROLE, pubrole))
        e("s_or_b32 s%d, s%d, s42" % (sTR, sTR))
    else:
        e("s_waitcnt lgkmcnt(%d)" % (0 if stamp >= 2 else 6))
        e("v_readfirstlane_b32 s%d, v%d" % (sTR, vMD))
    if force & 1: e("s_and_b32 s%d, s%d, 0xff" % (sTR, sTR))
    e("s_bitcmp1_b32 s%d, 8" % sTR)
    e("s_cbranch_scc0 L_nopre")
    e("buffer_load_dwordx2 v[%d:%d], v8, %s, 0 offen sc1" % (Bp + 4, Bp + 5, srd(WS)))
    e("buffer_load_dwordx4 %s, v6, %s, 0 offen sc1" % (v4(Bp), srd(WS)))
    e("L_nopre:")
    e("s_waitcnt lgkmcnt(%d)" % (0 if stamp >= 2 else 4))
    e("v_max3_f32 v%d, v%d, v%d, v%d" % (A + 4, T, T + 1, T + 2))
    e("v_max_f32 v%d, v%d, v%d" % (A + 4, A + 4, T + 3))
    for w in range(4): e("v_sub_f32 v%d, v%d, v%d" % (T + w, T + w, A + 4))
    for w in range(4): e("v_mul_f32 v%d, s%d, v%d" % (T + w, sC, T + w))
    for w in range(4): e("v_exp_f32 v%d, v%d" % (T + w, T + w))
    e("v_mul_f32 v%d, v%d, v%d" % (A + 5, T, T + 4))
    for w in range(1, 4): e("v_fmac_f32 v%d, v%d, v%d" % (A + 5, T + w, T + 4 + w))
    e("s_waitcnt lgkmcnt(0)")
    for c in range(4): e("v_mul_f32 v%d, v%d, v%d" % (A + c, T, Rd + c))
    for w in range(1, 4):
        for c in range(4): e("v_fmac_f32 v%d, v%d, v%d" % (A + c, T + w, Rd + w * 4 + c))
    ST("reduced")
    e("s_bitcmp1_b32 s%d, 8" % sTR)
    e("s_cbranch_scc1 L_have")
    e("s_and_b32 s42, s%d, 0xff" % sTR)
    e("s_cbranch_scc1 L_poll")
    e("buffer_store_dwordx4 %s, v6, %s, 0 offen sc1" % (v4(A), srd(WS)))
    e("s_mov_b64 exec, 1")
    e("buffer_store_dwordx2 v[%d:%d], v8, %s, 0 offen sc1" % (A + 4, A + 5, srd(WS)))
    e("v_lshlrev_b32 v11, 8, v11")
    e("s_waitcnt vmcnt(0)")
    e("s_barrier")
    e("s_cmp_lg_u32 s%d, 0" % sW)
    e("s_cbranch_scc1 L_fin")
    e("global_atomic_or v10, v11, s[12:13]")
    e("s_branch L_fin")
    e("L_poll:")
    if static: poll0 = 0
    if poll0:
        e("s_cmp_lg_u32 s%d, 0" % sW)
        e("s_cbranch_scc1 L_polled")
        e("s_mov_b64 exec, 1")
    e("s_mov_b32 s44, 0")
    e("L_poll1:")
    e("s_add_u32 s44, s44, 1")
    e("s_cmp_gt_u32 s44, 0x200000")
    e("s_cbranch_scc1 L_fin")
    e("global_load_dword v12, v10, s[12:13] sc1")
    e("s_waitcnt vmcnt(0)")
    e("v_readfirstlane_b32 s42, v12")
    e("s_lshr_b32 s42, s42, s43")
    e("s_bitcmp1_b32 s42, 8")
    if pslp:
        e("s_cbranch_scc1 L_poll2")
        e("s_sleep %d" % pslp)
        e("s_branch L_poll1")
        e("L_poll2:")
    else:
        e("s_cbranch_scc0 L_poll1")
    if poll0:
        e("s_mov_b64 exec, -1")
        e("L_polled:")
        e("s_barrier")
    e("buffer_load_dwordx2 v[%d:%d], v8, %s, 0 offen sc1" % (Bp + 4, Bp + 5, srd(WS)))
    e("buffer_load_dwordx4 %s, v6, %s, 0 offen sc1" % (v4(Bp), srd(WS)))
    e("L_have:")
    e("s_waitcnt vmcnt(1)")
    mt, fa, fb, dn = T, T + 1, T + 2, T + 3
    e("v_max_f32 v%d, v%d, v%d" % (mt, A + 4, Bp + 4))
    e("v_sub_f32 v%d, v%d, v%d" % (fa, A + 4, mt))
    e("v_sub_f32 v%d, v%d, v%d" % (fb, Bp + 4, mt))
    e("v_mul_f32 v%d, s%d, v%d" % (fa, sC, fa))
    e("v_mul_f32 v%d, s%d, v%d" % (fb, sC, fb))
    e("v_exp_f32 v%d, v%d" % (fa, fa))
    e("v_exp_f32 v%d, v%d" % (fb, fb))
    e("v_mul_f32 v%d, v%d, v%d" % (dn, A + 5, fa))
    e("v_mul_f32 v%d, v%d, v%d" % (mt, Bp + 5, fb))
    e("v_add_f32 v%d, v%d, v%d" % (dn, dn, mt))
    e("v_rcp_f32 v%d, v%d" % (dn, dn))
    for c in range(4): e("v_mul_f32 v%d, v%d, v%d" % (A + c, A + c, fa))
    e("s_waitcnt vmcnt(0)")
    for c in range(4): e("v_mul_f32 v%d, v%d, v%d" % (Bp + c, Bp + c, fb))
    for c in range(4): e("v_add_f32 v%d, v%d, v%d" % (A + c, A + c, Bp + c))
    for c in range(4): e("v_mul_f32 v%d, v%d, v%d" % (A + c, A + c, dn))
    e("v_cvt_pk_bf16_f32 v10, v%d, v%d" % (A, A + 1))
    e("v_cvt_pk_bf16_f32 v11, v%d, v%d" % (A + 2, A + 3))
    e("buffer_store_dwordx2 v[10:11], v2, %s, 0 offen %s" % (srd(OS), of))
    if stamp >= 2: e("s_mov_b32 s70, 1")
    e("L_fin:")
    if stamp:
        e("s_mov_b64 exec, -1")
        e("s_waitcnt vmcnt(0)")
        e("s_barrier")
        e("s_cmp_lg_u32 s%d, 0" % sW)
        e("s_cbranch_scc1 L_end")
        e("s_memrealtime s[52:53]")
        e("s_getreg_b32 s54, hwreg(HW_REG_HW_ID)")
        e("s_getreg_b32 s55, hwreg(HW_REG_XCC_ID)")
        e("s_lshl_b32 s42, s2, 5")
        e("s_add_u32 s42, s42, 0x1000000")
        e("v_mov_b32 v1, s42")
        e("s_waitcnt lgkmcnt(0)")
        for i in range(6): e("v_mov_b32 v%d, s%d" % (2 + i, 50 + i))
        e("v_mov_b32 v8, s%d" % sTR)
        e("s_mov_b64 exec, 1")
        e("global_store_dwordx4 v1, v[2:5], s[14:15]")
        e("global_store_dwordx3 v1, v[6:8], s[14:15] offset:16")
        if stamp >= 2:
            e("s_lshl_b32 s42, s2, 6")
            e("s_add_u32 s42, s42, 0x1100000")
            e("v_mov_b32 v1, s42")
            for i in range(12): e("v_mov_b32 v%d, s%d" % (12 + i, 72 + 2 * i if i < len(pts) else (70 if i == 9 else 52)))
            for w in range(4): e("ds_read_b32 v%d, v%d offset:%d" % (24 + w, vZ, w * 16 + 12))
            e("s_waitcnt lgkmcnt(0)")
            e("global_store_dwordx4 v1, v[24:27], s[14:15] offset:48")
            for i in range(3): e("global_store_dwordx4 v1, v[%d:%d], s[14:15] offset:%d" % (12 + 4 * i, 15 + 4 * i, 16 * i))
            sys.stderr.write("pts: " + " ".join(pts) + "\n")
    e("s_endpgm")

    e("L_helper:")
    e("v_and_b32 v2, 3, v0"); e("v_lshlrev_b32 v2, 4, v2")
    e("v_mov_b32 v4, 0"); e("v_mov_b32 v5, 0")
    e("ds_write_b64 v2, v[4:5]")
    if not pw: e("v_mov_b32 v2, 0")
    e("s_and_b32 s45, s2, 7"); e("s_lshl_b32 s45, s45, 8")
    e("v_and_b32 v9, 31, v0"); e("v_lshl_add_u32 v9, v9, 2, s45")
    e("s_lshr_b32 s47, s2, 3")
    e("s_lshl_b32 s46, s47, 2"); e("s_add_u32 s46, s46, s45")
    e("v_mov_b32 v10, s46")
    e("s_waitcnt lgkmcnt(0)")
    e("global_load_dword v18, v9, s[14:15] nt")
    e("s_barrier")
    e("s_waitcnt vmcnt(0)")
    e("v_readlane_b32 s48, v18, s47")
    e("L_h:")
    e("s_sleep %d" % slp)
    e("ds_read_b32 v16, v2")
    e("s_waitcnt lgkmcnt(0)")
    if pw:
        for w in range(4): e("v_readlane_b32 s%d, v16, %d" % (60 + w, w))
        e("s_add_u32 s57, s60, s61"); e("s_add_u32 s58, s62, s63"); e("s_add_u32 s57, s57, s58")
        SC = 4
    else:
        e("v_readfirstlane_b32 s57, v16"); SC = 1
    e("s_cmp_lt_u32 s57, %d" % (2 * SC))
    e("s_cbranch_scc1 L_h")
    e("s_cmp_ge_u32 s57, %d" % (EXITP * SC))
    e("s_cselect_b32 s58, %d, s57" % (2 * TOTAL * SC))
    e("s_add_u32 s58, s58, s48")
    e("v_mov_b32 v16, s58")
    e("s_mov_b64 exec, 1")
    e("global_store_dword v10, v16, s[14:15]")
    e("s_mov_b64 exec, -1")
    e("s_cmp_ge_u32 s57, %d" % (EXITP * SC))
    e("s_cbranch_scc1 L_end")
    e("global_load_dword v17, v9, s[14:15] nt")
    if pw:
        for w in range(4):
            e("s_lshl_b32 s%d, s%d, 2" % (60 + w, 60 + w)); e("s_add_u32 s%d, s%d, %d" % (60 + w, 60 + w, dl))
        e("s_waitcnt vmcnt(0)")
        e("v_sub_u32 v17, v17, v18")
        for w in range(4):
            e("v_cmp_lt_u32 s[58:59], s%d, v17" % (60 + w))
            e("s_bcnt1_i32_b32 s58, s58")
            e("s_cmp_ge_u32 s58, %d" % k)
            e("s_cselect_b32 s58, 1, 0")
            e("v_writelane_b32 v19, s58, %d" % w)
        e("s_mov_b64 exec, 15")
    else:
        e("s_add_u32 s57, s57, %d" % dl)
        e("s_waitcnt vmcnt(0)")
        e("v_sub_u32 v17, v17, v18")
        e("v_cmp_lt_u32 s[58:59], s57, v17")
        e("s_bcnt1_i32_b32 s58, s58")
        e("s_cmp_ge_u32 s58, %d" % k)
        e("s_cselect_b32 s58, 1, 0")
        e("v_mov_b32 v19, s58")
    e("ds_write_b32 v2, v19 offset:4")
    if pw: e("s_mov_b64 exec, -1")
    e("s_branch L_h")
    e("L_end:")
    e("s_endpgm")
    e('.section .rodata,"a"'); e(".p2align 6")
    e(".amdhsa_kernel %s" % NAME)
    e("  .amdhsa_next_free_vgpr 232")
    e("  .amdhsa_next_free_sgpr %d" % (100 if stamp >= 2 else 72))
    e("  .amdhsa_accum_offset 232")
    e("  .amdhsa_group_segment_fixed_size 0")
    e("  .amdhsa_kernarg_size 48")
    e("  .amdhsa_user_sgpr_count 2")
    e("  .amdhsa_user_sgpr_kernarg_segment_ptr 1")
    e("  .amdhsa_system_sgpr_workgroup_id_x 1")
    e(".end_amdhsa_kernel")
    L = [l for l in L if l is not None]
    L = fix_hazards(L)
    txt = "\n".join(l if (l.startswith(";") or l.startswith(".") or l.endswith(":") or l.startswith("  .")) else "    " + l.rstrip() for l in L) + "\n"
    assert hz.check_text(txt) == 0
    return txt

if __name__ == "__main__":
    for spec in sys.argv[1:]:
        name, _, rest = spec.partition(":")
        kw = {}
        for kv in rest.split(","):
            if not kv: continue
            k, v = kv.split("=")
            kw[k] = v.replace("+", " ") if k in ("flags", "of") else int(v)
        open(name if name.endswith(".s") else name + ".s", "w").write(gen(**kw))
```

```python
import sys
base = open(sys.argv[1]).read()
def mk(out, A, which, off):
    old = [l for l in base.split('\n') if '@launch' in l][0]
    real = old.replace("@launch ", "@launch kernel=standalone__mha_softmax__sampling_kernel ")
    post = "; @launch kernel=amp_kernel grid=(1,1,1) block=(64,1,1) lds=0"
    s = base.replace(old, real + "\n" + post)
    b = [".text", ".globl amp_kernel", ".p2align 8", ".type amp_kernel,@function", "amp_kernel:",
         "s_cmp_ge_u32 s2, 1", "s_cbranch_scc1 L_amp_end",
         "s_load_dwordx2 s[4:5], s[0:1], 40", "s_memrealtime s[6:7]",
         "v_lshlrev_b32 v1, 5, v0", "v_add_u32 v1, 0x1000000, v1", "v_lshlrev_b32 v2, 6, v0", "v_add_u32 v2, 0x1100000, v2",
         "s_waitcnt lgkmcnt(0)"]
    for j in range(4):
        b += ["global_load_dword v%d, v1, s[4:5]" % (4 + j)]
        if which < 0: b += ["global_load_dword v%d, v1, s[4:5] offset:8" % (8 + j)]
        else: b += ["global_load_dword v%d, v2, s[4:5] offset:%d" % (8 + j, 4 * which)]
        b += ["v_add_u32 v1, 2048, v1", "v_add_u32 v2, 4096, v2"]
    b += ["s_waitcnt vmcnt(0)", "v_min_u32 v4, v4, v5", "v_min_u32 v6, v6, v7", "v_min_u32 v4, v4, v6",
          "v_max_u32 v8, v8, v9", "v_max_u32 v10, v10, v11", "v_max_u32 v8, v8, v10", "s_nop 1",
          "s_mov_b32 s10, -1", "s_mov_b32 s11, 0", "s_mov_b32 s12, 0", "L_amp_r:",
          "v_readlane_b32 s8, v4, s12", "v_readlane_b32 s9, v8, s12", "s_min_u32 s10, s10, s8", "s_max_u32 s11, s11, s9",
          "s_add_u32 s12, s12, 1", "s_cmp_lt_u32 s12, 64", "s_cbranch_scc1 L_amp_r",
          "s_sub_u32 s11, s11, s10", "s_sub_i32 s11, s11, %d" % off, "s_max_i32 s11, s11, 0", "s_min_u32 s11, s11, 5000", "s_mul_i32 s11, s11, %d" % A,
          "L_amp_s:", "s_memrealtime s[8:9]", "s_waitcnt lgkmcnt(0)", "s_sub_u32 s8, s8, s6", "s_cmp_lt_u32 s8, s11", "s_cbranch_scc1 L_amp_s",
          "L_amp_end:", "s_endpgm"]
    kd = ['.section .rodata,"a"', ".p2align 6", ".amdhsa_kernel amp_kernel"] + ["  .amdhsa_" + l for l in ("next_free_vgpr 16", "next_free_sgpr 24", "accum_offset 16", "group_segment_fixed_size 0", "kernarg_size 48", "user_sgpr_count 2", "user_sgpr_kernarg_segment_ptr 1", "system_sgpr_workgroup_id_x 1")] + [".end_amdhsa_kernel"]
    open(out, "w").write(s + "\n".join(b + kd) + "\n")
mk("../t/A0.s", 0, -1, 6000)
mk("../t/A_span.s", 5, -1, 6000)
mk("../t/A_karg.s", 20, 0, 0)
mk("../t/A_k0.s", 20, 1, 0)
mk("../t/A_kdone.s", 5, 2, 3000)
mk("../t/A_vland.s", 5, 4, 6000)
```

```python
import sys
base = open(sys.argv[1]).read()
def mk(out, A, which, off):
    old = [l for l in base.split('\n') if '@launch' in l][0]
    real = old.replace("@launch ", "@launch kernel=standalone__mha_softmax__sampling_kernel ")
    post = "; @launch kernel=amp_kernel grid=(1,1,1) block=(64,1,1) lds=0"
    s = base.replace(old, real + "\n" + post)
    b = [".text", ".globl amp_kernel", ".p2align 8", ".type amp_kernel,@function", "amp_kernel:",
         "s_cmp_ge_u32 s2, 1", "s_cbranch_scc1 L_amp_end",
         "s_load_dwordx2 s[4:5], s[0:1], 40", "s_memrealtime s[6:7]",
         "v_lshlrev_b32 v1, 5, v0", "v_add_u32 v1, 0x1000000, v1", "v_lshlrev_b32 v2, 6, v0", "v_add_u32 v2, 0x1100000, v2",
         "s_waitcnt lgkmcnt(0)"]
    for j in range(4):
        b += ["global_load_dword v%d, v1, s[4:5]" % (4 + j)]
        if which < 0: b += ["global_load_dword v%d, v1, s[4:5] offset:8" % (8 + j)]
        else: b += ["global_load_dword v%d, v2, s[4:5] offset:%d" % (8 + j, 4 * which)]
        b += ["v_add_u32 v1, 2048, v1", "v_add_u32 v2, 4096, v2"]
    b += ["s_waitcnt vmcnt(0)", "v_min_u32 v4, v4, v5", "v_min_u32 v6, v6, v7", "v_min_u32 v4, v4, v6",
          "v_max_u32 v8, v8, v9", "v_max_u32 v10, v10, v11", "v_max_u32 v8, v8, v10", "s_nop 1",
          "s_mov_b32 s10, -1", "s_mov_b32 s11, 0", "s_mov_b32 s12, 0", "L_amp_r:",
          "v_readlane_b32 s8, v4, s12", "v_readlane_b32 s9, v8, s12", "s_min_u32 s10, s10, s8", "s_max_u32 s11, s11, s9",
          "s_add_u32 s12, s12, 1", "s_cmp_lt_u32 s12, 64", "s_cbranch_scc1 L_amp_r",
          "s_sub_u32 s11, s11, s10", "s_sub_i32 s11, s11, %d" % off, "s_max_i32 s11, s11, 0", "s_min_u32 s11, s11, 5000", "s_mul_i32 s11, s11, %d" % A,
          "L_amp_s:", "s_memrealtime s[8:9]", "s_waitcnt lgkmcnt(0)", "s_sub_u32 s8, s8, s6", "s_cmp_lt_u32 s8, s11", "s_cbranch_scc1 L_amp_s",
          "L_amp_end:", "s_endpgm"]
    kd = ['.section .rodata,"a"', ".p2align 6", ".amdhsa_kernel amp_kernel"] + ["  .amdhsa_" + l for l in ("next_free_vgpr 16", "next_free_sgpr 24", "accum_offset 16", "group_segment_fixed_size 0", "kernarg_size 48", "user_sgpr_count 2", "user_sgpr_kernarg_segment_ptr 1", "system_sgpr_workgroup_id_x 1")] + [".end_amdhsa_kernel"]
    open(out, "w").write(s + "\n".join(b + kd) + "\n")
mk(sys.argv[2], int(sys.argv[3]), int(sys.argv[4]), int(sys.argv[5]))
```
